```python
import torch

def _softmax(x, axis=-1):
    return torch.softmax(x, dim=axis)
def _gelu(x):
    return torch.nn.functional.gelu(x, approximate="tanh")
def _silu(x):
    return torch.nn.functional.silu(x)
def _sigmoid(x):
    return torch.sigmoid(x)
def _layernorm(x, axis=-1, eps=1e-5):
    m = x.mean(dim=axis, keepdim=True)
    v = x.var(dim=axis, keepdim=True, unbiased=False)
    return (x - m) / torch.sqrt(v + eps)
def _scatter_add(tgt, idx, src, axis=0):
    return tgt.clone().index_add_(axis, idx, src)
def _segment_sum(src, seg, n):
    out = torch.zeros((n,) + src.shape[1:], dtype=src.dtype)
    return out.index_add_(0, seg, src)
def _pad(x, pw):
    flat = tuple(v for pair in reversed(pw) for v in pair)
    return torch.nn.functional.pad(x, flat)

kernel_name = 'concat_heads__gqa_block_cached__gqa_block_cached__near_ridge'

def setup_inputs():

    _w = (lambda a: (lambda t: t.to(torch.bfloat16) if t.is_floating_point() else t)(torch.as_tensor(a)))
    def _A_setup():
        B, Sq, D = 8, 80, 448
        Hq, Hkv, Sk, Dh = 16, 8, 1024, 256
        assert Hq % Hkv == 0, (Hq, Hkv)
        return {
            "x": _w((lambda *s: torch.randn(*s, dtype=torch.bfloat16) * 0.8)(B, Sq, D)),
            "k_cache": _w((lambda *s: torch.randn(*s, dtype=torch.bfloat16) * 0.8)(B, Hkv, Sk, Dh)),
            "v_cache": _w((lambda *s: torch.randn(*s, dtype=torch.bfloat16) * 0.05)(B, Hkv, Sk, Dh)),
            "wq": _w((lambda *s: torch.randn(*s, dtype=torch.bfloat16) * 0.8)(D, Hq * Dh) * (D ** -0.5)),
            "wo": _w((lambda *s: torch.randn(*s, dtype=torch.bfloat16) * 0.05)(Hq * Dh, D) * ((Hq * Dh) ** -0.5)),
        }
    _A_in = _A_setup()

    def _B_setup():
        B, Sq, D = 8, 80, 448
        Hq, Hkv, Sk, Dh = 16, 8, 1024, 256
        assert Hq % Hkv == 0, (Hq, Hkv)
        return {
            "x": _w((lambda *s: torch.randn(*s, dtype=torch.bfloat16) * 0.8)(B, Sq, D)),
            "k_cache": _w((lambda *s: torch.randn(*s, dtype=torch.bfloat16) * 0.8)(B, Hkv, Sk, Dh)),
            "v_cache": _w((lambda *s: torch.randn(*s, dtype=torch.bfloat16) * 0.05)(B, Hkv, Sk, Dh)),
            "wq": _w((lambda *s: torch.randn(*s, dtype=torch.bfloat16) * 0.8)(D, Hq * Dh) * (D ** -0.5)),
            "wo": _w((lambda *s: torch.randn(*s, dtype=torch.bfloat16) * 0.05)(Hq * Dh, D) * ((Hq * Dh) ** -0.5)),
        }
    _B_in = _B_setup()

    return {
        "A_x": _A_in["x"],
        "A_k_cache": _A_in["k_cache"],
        "A_v_cache": _A_in["v_cache"],
        "A_wq": _A_in["wq"],
        "A_wo": _A_in["wo"],
        "B_x": _B_in["x"],
        "B_k_cache": _B_in["k_cache"],
        "B_v_cache": _B_in["v_cache"],
        "B_wq": _B_in["wq"],
        "B_wo": _B_in["wo"],
    }

def reference(A_x, A_k_cache, A_v_cache, A_wq, A_wo, B_x, B_k_cache, B_v_cache, B_wq, B_wo):
    def _A_ref(x, k_cache, v_cache, wq, wo):
        B, Sq, D = x.shape
        Hq, Dh = 16, 256
        Hkv = k_cache.shape[1]
        rep = Hq // Hkv
        q = (lambda x, *d: x.permute(*d))((x @ wq).reshape(B, Sq, Hq, Dh), 0, 2, 1, 3)
        k = (lambda x, n, axis: torch.repeat_interleave(x, n, dim=axis))(k_cache, rep, axis=1)
        v = (lambda x, n, axis: torch.repeat_interleave(x, n, dim=axis))(v_cache, rep, axis=1)
        scores = torch.einsum("bhqd,bhkd->bhqk", q, k) * (Dh ** -0.5)
        p = _softmax(scores, axis=-1)
        o = torch.einsum("bhqk,bhkd->bhqd", p, v)
        return (lambda x, *d: x.permute(*d))(o, 0, 2, 1, 3).reshape(B, Sq, Hq * Dh) @ wo

    def _B_ref(x, k_cache, v_cache, wq, wo):
        B, Sq, D = x.shape
        Hq, Dh = 16, 256
        Hkv = k_cache.shape[1]
        rep = Hq // Hkv
        q = (lambda x, *d: x.permute(*d))((x @ wq).reshape(B, Sq, Hq, Dh), 0, 2, 1, 3)
        k = (lambda x, n, axis: torch.repeat_interleave(x, n, dim=axis))(k_cache, rep, axis=1)
        v = (lambda x, n, axis: torch.repeat_interleave(x, n, dim=axis))(v_cache, rep, axis=1)
        scores = torch.einsum("bhqd,bhkd->bhqk", q, k) * (Dh ** -0.5)
        p = _softmax(scores, axis=-1)
        o = torch.einsum("bhqk,bhkd->bhqd", p, v)
        return (lambda x, *d: x.permute(*d))(o, 0, 2, 1, 3).reshape(B, Sq, Hq * Dh) @ wo

    a = _A_ref(A_x, A_k_cache, A_v_cache, A_wq, A_wo)
    b = _B_ref(B_x, B_k_cache, B_v_cache, B_wq, B_wo)
    return torch.concatenate([a, b], axis=-1)
```

```python
import re

_RV = re.compile(r'\bv\[(\d+):(\d+)\]|\bv(\d+)\b')
_RS = re.compile(r'\bs\[(\d+):(\d+)\]|\bs(\d+)\b|\b(vcc|m0|exec)\b')

def vregs(op):
    out = []
    for m in _RV.finditer(op):
        if m.group(3) is not None:
            out.append(int(m.group(3)))
        else:
            out.extend(range(int(m.group(1)), int(m.group(2)) + 1))
    return out

def sregs(op):
    out = []
    for m in _RS.finditer(op):
        if m.group(4):
            out.append(m.group(4))
        elif m.group(3) is not None:
            out.append(int(m.group(3)))
        else:
            out.extend(range(int(m.group(1)), int(m.group(2)) + 1))
    return out

def vr(a, n=1):
    return f'v{a}' if n == 1 else f'v[{a}:{a+n-1}]'

def sr(a, n=1):
    return f's{a}' if n == 1 else f's[{a}:{a+n-1}]'

TRANS = ('v_exp_f32', 'v_log_f32', 'v_rcp_f32', 'v_rsq_f32', 'v_sqrt_f32', 'v_sin_f32', 'v_cos_f32')

class B:
    def __init__(self):
        self.lines = []
        self.reset()
        self.maxv = 0

    def reset(self):
        self.n = 100
        self.w_valu = {}
        self.w_trans = {}
        self.w_mfma = {}
        self.r_mfmac = {}
        self.w_sgpr_valu = {}
        self.w_m0 = -100
        self.st_data = {}
        self.lds_q = []
        self.vm_q = []
        self.sm_pending = False

    def _emit(self, text, states=1):
        self.lines.append('  ' + text)
        self.n += states

    def comment(self, t):
        self.lines.append('  ; ' + t)

    def label(self, name):
        self.lines.append(name + ':')

    def nop(self, k):
        while k > 0:
            c = min(k, 16)
            self._emit(f's_nop {c-1}', c)
            k -= c

    def _need(self, idx, dist):
        gap = self.n - idx - 1
        if gap < dist:
            self.nop(dist - gap)

    def _track(self, regs):
        for r in regs:
            if r > self.maxv:
                self.maxv = r

    def wait_lds(self, n):
        if len(self.lds_q) > n:
            self._emit(f's_waitcnt lgkmcnt({n})')
            self.lds_q = self.lds_q[len(self.lds_q) - n:] if n else []

    def wait_vm(self, n, force=False):
        if len(self.vm_q) > n or force:
            self._emit(f's_waitcnt vmcnt({n})')
            self.vm_q = self.vm_q[len(self.vm_q) - n:] if n else []

    def _auto_wait(self, regs):
        rs = set(regs)
        for q, fn in ((self.lds_q, self.wait_lds), (self.vm_q, self.wait_vm)):
            last = -1
            for i, d in enumerate(q):
                if d & rs:
                    last = i
            if last >= 0:
                fn(len(q) - 1 - last)

    def _mfma_dep(self, regs, dist=8):
        for r in regs:
            if r in self.w_mfma:
                self._need(self.w_mfma[r][0], dist)

    def salu(self, text):
        op = text.split()[0]
        if 'm0' in text.split(',')[0]:
            self._emit(text)
            self.w_m0 = self.n - 1
            return
        self._emit(text)

    def smem(self, text):
        self._emit(text)
        self.sm_pending = True

    def wait_smem(self):
        self._emit('s_waitcnt lgkmcnt(0)')
        self.lds_q = []
        self.sm_pending = False

    def barrier(self):
        self._emit('s_barrier')

    def valu(self, text):
        op, rest = text.split(None, 1)
        ops = [o.strip() for o in rest.split(',')]
        base = op.replace('_e32', '').replace('_e64', '')
        if base.startswith('v_cmp'):
            dv, ds_, srcs = [], sregs(ops[0]), ops[1:]
        elif base in ('v_readfirstlane_b32', 'v_readlane_b32'):
            dv, ds_, srcs = [], sregs(ops[0]), ops[1:]
        elif base.startswith('v_permlane') and 'swap' in base:
            dv, ds_, srcs = vregs(ops[0]) + vregs(ops[1]), [], ops
        else:
            dv, ds_, srcs = vregs(ops[0]), [], ops[1:]
            if base in ('v_fmac_f32',):
                srcs = ops
        rv = [r for s in srcs for r in vregs(s)]
        rs = [r for s in srcs for r in sregs(s)]
        self._track(dv + rv)
        self._auto_wait(rv + dv)
        self._mfma_dep(rv + dv, 8)
        for r in dv:
            if r in self.r_mfmac:
                self._need(self.r_mfmac[r], 3)
            if r in self.st_data:
                self._need(self.st_data[r], 2)
        is_trans = base in TRANS
        for r in rv:
            if r in self.w_trans and not is_trans:
                self._need(self.w_trans[r], 1)
            if base in ('v_readfirstlane_b32', 'v_readlane_b32') and r in self.w_valu:
                self._need(self.w_valu[r], 1)
            if (base.startswith('v_permlane') or 'dpp' in text or 'row_' in text) and r in self.w_valu:
                self._need(self.w_valu[r], 2)
        for s in rs:
            if s in self.w_sgpr_valu:
                self._need(self.w_sgpr_valu[s], 2)
        self._emit(text)
        idx = self.n - 1
        for r in dv:
            self.w_valu[r] = idx
            if is_trans:
                self.w_trans[r] = idx
            else:
                self.w_trans.pop(r, None)
            self.w_mfma.pop(r, None)
        for s in ds_:
            self.w_sgpr_valu[s] = idx

    def mfma(self, d, a, b, c, op='v_mfma_f32_16x16x32_bf16', dn=4):
        D = list(range(d, d + dn)); A = list(range(a, a + 4)); Bv = list(range(b, b + 4))
        C = [] if c is None else list(range(c, c + dn))
        self._track(D + A + Bv + C)
        self._auto_wait(A + Bv + C + D)
        for r in A + Bv + C:
            if r in self.w_valu:
                self._need(self.w_valu[r], 2)
        self._mfma_dep(A + Bv, 8)
        for r in C:
            if r in self.w_mfma:
                idx, rng = self.w_mfma[r]
                if rng != (c, c + dn - 1):
                    self._need(idx, 6)
        if c != d:
            for r in D:
                if r in self.w_mfma:
                    self._need(self.w_mfma[r][0], 8)
        cs = '0' if c is None else vr(c, dn)
        self._emit(f'{op} {vr(d, dn)}, {vr(a, 4)}, {vr(b, 4)}, {cs}')
        idx = self.n - 1
        for r in D:
            self.w_mfma[r] = (idx, (d, d + dn - 1))
            self.w_valu.pop(r, None); self.w_trans.pop(r, None)
        for r in C:
            self.r_mfmac[r] = idx

    def _lds_cap(self):
        if len(self.lds_q) >= 15:
            self.wait_lds(14)

    def ds_read(self, op, dst, n, addr, offset=0):
        D = list(range(dst, dst + n))
        assert 0 <= offset < 65536, offset
        self._track(D + [addr])
        self._auto_wait(D + [addr])
        self._mfma_dep(D + [addr], 8)
        self._lds_cap()
        self._emit(f'{op} {vr(dst, n)}, v{addr}' + (f' offset:{offset}' if offset else ''))
        self.lds_q.append(set(D))
        for r in D:
            self.w_valu.pop(r, None); self.w_trans.pop(r, None); self.w_mfma.pop(r, None)

    def ds_write(self, op, addr, src, n, offset=0):
        S = list(range(src, src + n))
        assert 0 <= offset < 65536, offset
        self._track(S + [addr])
        self._auto_wait(S + [addr])
        self._mfma_dep(S + [addr], 8)
        self._lds_cap()
        self._emit(f'{op} v{addr}, {vr(src, n)}' + (f' offset:{offset}' if offset else ''))
        self.lds_q.append(set())

    def _vmem_sgpr(self, text):
        for s in sregs(text):
            if s in self.w_sgpr_valu:
                self._need(self.w_sgpr_valu[s], 5)

    def _vm_cap(self):
        if len(self.vm_q) >= 63:
            self.wait_vm(62)

    def buf_load(self, dst, n, voff, srd, soff, offset=0, flags=''):
        D = list(range(dst, dst + n))
        op = {1: 'buffer_load_dword', 2: 'buffer_load_dwordx2', 4: 'buffer_load_dwordx4'}[n]
        assert 0 <= offset < 4096
        self._track(D + [voff])
        self._auto_wait(D + [voff])
        self._mfma_dep(D + [voff], 8)
        t = f'{op} {vr(dst, n)}, v{voff}, {sr(srd, 4)}, {soff} offen' + (f' offset:{offset}' if offset else '') + (f' {flags}' if flags else '')
        self._vmem_sgpr(t); self._vm_cap()
        self._emit(t)
        self.vm_q.append(set(D))
        for r in D:
            self.w_valu.pop(r, None); self.w_trans.pop(r, None); self.w_mfma.pop(r, None)

    def buf_store(self, src, n, voff, srd, soff, offset=0, flags=''):
        S = list(range(src, src + n))
        op = {1: 'buffer_store_dword', 2: 'buffer_store_dwordx2', 4: 'buffer_store_dwordx4'}[n]
        assert 0 <= offset < 4096
        self._track(S + [voff])
        self._auto_wait(S + [voff])
        self._mfma_dep(S + [voff], 8)
        t = f'{op} {vr(src, n)}, v{voff}, {sr(srd, 4)}, {soff} offen' + (f' offset:{offset}' if offset else '') + (f' {flags}' if flags else '')
        self._vmem_sgpr(t); self._vm_cap()
        self._emit(t)
        self.vm_q.append(set())
        if n >= 3:
            for r in S:
                self.st_data[r] = self.n - 1

    def dma(self, voff, srd, soff, offset=0, flags=''):
        assert 0 <= offset < 4096
        self._track([voff])
        self._auto_wait([voff])
        self._need(self.w_m0, 1)
        t = f'buffer_load_dwordx4 v{voff}, {sr(srd, 4)}, {soff} offen' + (f' offset:{offset}' if offset else '') + (f' {flags}' if flags else '') + ' lds'
        self._vmem_sgpr(t); self._vm_cap()
        self._emit(t)
        self.vm_q.append(set())

    def text(self):
        return '\n'.join(self.lines) + '\n'
```

```python
import sys, argparse
from asmb import B, vr, sr

NAME = 'concat_heads__gqa_block_cached__gqa_block_cached__near_ridge'

HEADER = open('cdna_kernels/' + NAME + '.s.ref').read().split('; Override launch')[0]

PAIR = 33792; CH = 16896; GRP = 8448; BLK = 1056
XB = 3 * PAIR
MISC = 4 * PAIR
PB = MISC
MX = MISC + 20480
LDS_TOTAL = 163840
WOP = 928
NSTEP = 47
def pair(s): return ((s + 1) % 4) * PAIR

C_EXP = 0.0625 * 1.4426950408889634
import struct
def f32hex(x): return '0x%08x' % struct.unpack('<I', struct.pack('<f', x))[0]

def kd(name, vgpr, sgpr=96):
    return f'''.section .rodata,"a"
.p2align 6
.amdhsa_kernel {name}
  .amdhsa_next_free_vgpr {vgpr}
  .amdhsa_next_free_sgpr {sgpr}
  .amdhsa_accum_offset {(vgpr + 3) // 4 * 4}
  .amdhsa_group_segment_fixed_size 0
  .amdhsa_kernarg_size 104
  .amdhsa_user_sgpr_count 2
  .amdhsa_user_sgpr_kernarg_segment_ptr 1
  .amdhsa_system_sgpr_workgroup_id_x 1
.end_amdhsa_kernel
'''

def gen(o):
    PART = 71680 if o.part == 'bf16' else 143360
    b = B()
    S = b.salu; V = b.valu
    main = 'main_kernel'
    b.lines.append(f'.globl {main}\n.p2align 8\n.type {main},@function\n{main}:')
    S('s_cmp_ge_u32 s2, 256'); S('s_cbranch_scc1 L_main_end')
    if o.stamps:
        b.smem('s_memrealtime s[60:61]')
    S('s_and_b32 s3, s2, 7')
    S('s_lshr_b32 s4, s2, 3')
    S('s_and_b32 s5, s4, 1')
    S('s_lshr_b32 s6, s4, 1'); S('s_and_b32 s6, s6, 7')
    S('s_lshr_b32 s7, s4, 4')
    S('s_lshl_b32 s8, s3, 1'); S('s_add_u32 s8, s8, s5')
    S('s_mul_i32 s9, s7, 40')
    S('s_add_u32 s10, s0, s9'); S('s_addc_u32 s11, s1, 0')
    b.smem('s_load_dwordx8 s[12:19], s[10:11], 0')
    b.smem('s_load_dwordx2 s[20:21], s[10:11], 32')
    b.smem('s_load_dwordx2 s[22:23], s[0:1], 96')
    V('v_lshrrev_b32 v1, 6, v0')
    V('v_and_b32 v0, 63, v0')
    V('v_readfirstlane_b32 s24, v1')
    S('s_cmp_eq_u32 s6, 7'); S('s_cselect_b32 s29, 0, s6')
    if not o.rot:
        S('s_mov_b32 s29, 0')
    b.nop(2)
    S('s_cmp_ge_u32 s24, 10'); S('s_cbranch_scc1 L_loader')

    S('s_lshr_b32 s25, s24, 1')
    S('s_and_b32 s26, s24, 1')
    V('v_and_b32 v10, 15, v0')
    V('v_lshrrev_b32 v11, 4, v0')
    S('s_lshl_b32 s27, s25, 4')
    V('v_add_u32 v12, s27, v10')
    V('v_mul_u32_u24 v12, 896, v12')
    V('v_lshl_add_u32 v12, v11, 4, v12')
    b.wait_smem()
    S('s_mul_i32 s27, s6, 71680')
    S('s_add_u32 s32, s12, s27'); S('s_addc_u32 s33, s13, 0')
    S('s_mov_b32 s34, 71680'); S('s_mov_b32 s35, 0x00020000')
    XF = 48
    S('s_mov_b32 s30, s29')
    for s in range(7):
        S('s_lshl_b32 s31, s30, 7')
        b.buf_load(XF + 8 * s, 4, 12, 32, 's31', 0)
        b.buf_load(XF + 8 * s + 4, 4, 12, 32, 's31', 64)
        if s < 6:
            S('s_add_u32 s30, s30, 1'); S('s_cmp_eq_u32 s30, 7'); S('s_cselect_b32 s30, 0, s30')
    S(f's_mul_i32 s27, s2, {PART}')
    S('s_add_u32 s36, s22, s27'); S('s_addc_u32 s37, s23, 0')
    if o.stamps:
        S('s_add_u32 s36, s36, 4096'); S('s_addc_u32 s37, s37, 0')
    S(f's_mov_b32 s38, {PART}'); S('s_mov_b32 s39, 0x00020000')
    V('v_and_b32 v13, 7, v10'); V(f'v_mul_u32_u24 v13, {BLK}, v13')
    V('v_lshrrev_b32 v14, 3, v10'); V('v_lshl_add_u32 v13, v14, 9, v13')
    V('v_lshl_add_u32 v1, v11, 4, v13')
    S(f's_mul_i32 s27, s25, {GRP}'); S(f's_add_u32 s27, s27, {XB}')
    V('v_add_u32 v5, s27, v1')
    V('v_lshl_add_u32 v15, v11, 3, v13'); V('v_add_u32 v15, s27, v15')
    S('s_lshl_b32 s28, s26, 8')
    V('v_add_u32 v15, s28, v15')
    S(f's_mul_i32 s27, s26, {CH}')
    V('v_add_u32 v1, s27, v1')
    V('v_lshrrev_b32 v13, 2, v10'); V('v_and_b32 v14, 1, v11'); V('v_lshl_add_u32 v13, v14, 2, v13')
    V(f'v_mul_u32_u24 v13, {BLK}, v13')
    V('v_and_b32 v14, 3, v10'); V('v_lshl_add_u32 v13, v14, 3, v13')
    V('v_add_u32 v13, s28, v13')
    V('v_lshrrev_b32 v14, 1, v11')
    V('v_lshl_add_u32 v2, v14, 9, v13')
    V(f'v_mul_u32_u24 v14, {GRP}, v14'); V('v_add_u32 v3, v14, v13')
    V('v_lshrrev_b32 v13, 2, v10'); V('v_lshl_add_u32 v13, v11, 2, v13'); V(f'v_mul_u32_u24 v13, {WOP}, v13')
    V('v_and_b32 v14, 3, v10'); V('v_lshl_add_u32 v13, v14, 3, v13')
    S('s_mul_i32 s27, s26, 448'); V('v_add_u32 v4, s27, v13')
    S('s_lshl_b32 s27, s25, 11'); S(f's_add_u32 s27, s27, {PB}')
    V('v_lshlrev_b32 v8, 4, v0'); V('v_add_u32 v8, s27, v8')
    S('s_lshl_b32 s28, s26, 10'); V('v_add_u32 v9, s28, v8')
    S(f's_mov_b32 s40, {f32hex(C_EXP)}')

    FB = 112; NFB = 8
    ACC = 16
    fbi = [0]
    def next_fb():
        r = FB + 4 * (fbi[0] % NFB); fbi[0] += 1; return r

    def run_tr_step(items, ahead=5, between=None):
        regs = []
        def issue(k):
            r = next_fb(); regs.append(r)
            b.ds_read('ds_read_b64_tr_b16', r, 2, 14, items[k][0])
            b.ds_read('ds_read_b64_tr_b16', r + 2, 2, 14, items[k][1])
        for k in range(min(ahead, len(items))): issue(k)
        for k in range(len(items)):
            if k + ahead < len(items): issue(k + ahead)
            items[k][2](regs[k])
            if between: between(k)

    for s in range(7):
        b.barrier()
        V(f'v_add_u32 v14, {pair(s)}, v3')
        items = []
        for ks in range(2):
            for t in range(8):
                def f(r, t=t, ks=ks, s=s):
                    first = (s == 0 and ks == 0)
                    b.mfma(ACC + 4 * t, r, XF + 8 * s + 4 * ks, None if first else ACC + 4 * t)
                items.append((ks * CH + 32 * t, ks * CH + 32 * t + 512, f))
        run_tr_step(items)
    b.barrier()
    for t in range(8):
        a = ACC + 4 * t; r = FB + 2 * t
        V(f'v_cvt_pk_bf16_f32 v{r}, v{a}, v{a+1}'); V(f'v_cvt_pk_bf16_f32 v{r+1}, v{a+2}, v{a+3}')
        b.ds_write('ds_write_b64', 15, r, 2, 32 * t)
    b.wait_lds(0)
    b.barrier()
    QF = 16
    for u in range(8):
        b.ds_read('ds_read_b128', QF + 4 * u, 4, 5, 64 * u)
    V('v_mov_b32 v6, 0xff800000'); V('v_mov_b32 v7, 0xff800000')
    b.wait_lds(0)

    SR = 48; A1 = 144
    def post(k):
        a = A1 + (k & 1) * 8; d = SR + 4 * k
        ops = []
        for q in range(4):
            ops.append(f'v_cvt_pk_bf16_f32 v{d+q}, v{a+2*q}, v{a+2*q+1}')
            m = 6 + (q & 1)
            ops.append(f'v_max3_f32 v{m}, v{m}, v{a+2*q}, v{a+2*q+1}')
        return ops
    for k in range(16):
        s = 7 + k
        b.barrier()
        V(f'v_add_u32 v14, {pair(s)}, v1')
        a = A1 + (k & 1) * 8
        order = [(T, u) for u in range(8) for T in range(2)]
        regs = []
        def issue(n):
            T, u = order[n]; r = next_fb(); regs.append(r)
            b.ds_read('ds_read_b128', r, 4, 14, T * GRP + 64 * u)
        ahead = 7
        for n in range(ahead): issue(n)
        pend = post(k - 1) if k > 0 else []
        for n in range(16):
            T, u = order[n]
            b.mfma(a + 4 * T, regs[n], QF + 4 * u, None if u == 0 else a + 4 * T)
            if n + ahead < 16: issue(n + ahead)
            if pend and n >= 2: V(pend.pop(0))
        for p in pend: V(p)
    for p in post(15): V(p)
    V('v_max_f32 v6, v6, v7')
    S('s_lshl_b32 s27, s25, 9'); S(f's_add_u32 s27, s27, {MX}')
    V('v_lshlrev_b32 v13, 5, v10'); V('v_add_u32 v13, s27, v13')
    S('s_lshl_b32 s28, s26, 4'); V('v_lshl_add_u32 v14, v11, 2, v13'); V('v_add_u32 v14, s28, v14')
    b.ds_write('ds_write_b32', 14, 6, 1)
    b.wait_lds(0)
    b.barrier()
    b.ds_read('ds_read_b128', 144, 4, 13, 0); b.ds_read('ds_read_b128', 148, 4, 13, 16)
    V('v_max3_f32 v6, v144, v145, v146'); V('v_max3_f32 v7, v147, v148, v149')
    V('v_max3_f32 v6, v6, v150, v151'); V('v_max_f32 v6, v6, v7')
    V('v_cvt_pk_bf16_f32 v6, v6, v6'); V('v_lshlrev_b32 v6, 16, v6')
    V('v_mul_f32 v6, s40, v6'); V('v_sub_f32 v6, 0, v6')
    PF = 144; LA = 152; ON = 156; T0 = 160
    for q in range(4): V(f'v_mov_b32 v{ON+q}, 0x3f803f80')
    def softmax_ops(k):
        ops = []
        d = SR + 4 * k
        for q in range(4):
            ops.append(f'v_lshlrev_b32 v{T0+2*q}, 16, v{d+q}')
            ops.append(f'v_and_b32 v{T0+2*q+1}, 0xffff0000, v{d+q}')
        for q in range(8): ops.append(f'v_fma_f32 v{T0+q}, v{T0+q}, s40, v6')
        for q in range(8): ops.append(f'v_exp_f32 v{T0+q}, v{T0+q}')
        for q in range(4): ops.append(f'v_cvt_pk_bf16_f32 v{T0+q}, v{T0+2*q}, v{T0+2*q+1}')
        return ops
    for p in softmax_ops(0): V(p)
    b.ds_write('ds_write_b128', 9, T0, 4, 0)
    b.wait_lds(0)

    OA = 16
    for k in range(16):
        s = 23 + k
        b.barrier()
        b.ds_read('ds_read_b128', PF, 4, 8, (k & 1) * 10240)
        b.ds_read('ds_read_b128', PF + 4, 4, 8, (k & 1) * 10240 + 1024)
        V(f'v_add_u32 v14, {pair(s)}, v2')
        pend = softmax_ops(k + 1) if k < 15 else []
        items = []
        for ks in range(2):
            for t in range(8):
                def f(r, t=t, ks=ks, k=k):
                    first = (k == 0 and ks == 0)
                    b.mfma(OA + 4 * t, r, PF + 4 * ks, None if first else OA + 4 * t)
                    if t == 7:
                        b.mfma(LA, ON, PF + 4 * ks, None if first else LA)
                items.append((ks * CH + 32 * t, ks * CH + 32 * t + GRP, f))
        def between(n):
            for _ in range(2):
                if pend: V(pend.pop(0))
        run_tr_step(items, ahead=5, between=between)
        for p in pend: V(p)
        if k < 15:
            b.ds_write('ds_write_b128', 9, T0, 4, ((k + 1) & 1) * 10240)
            b.wait_lds(0)
    V(f'v_rcp_f32 v7, v{LA}')
    for r in range(32): V(f'v_mul_f32 v{OA+r}, v{OA+r}, v7')
    for uu in range(4):
        for q in range(4):
            a = OA + 8 * uu + 2 * q
            V(f'v_cvt_pk_bf16_f32 v{FB+4*uu+q}, v{a}, v{a+1}')
    S('s_lshl_b32 s27, s25, 13'); S(f's_add_u32 s27, s27, {XB}')
    V('v_lshlrev_b32 v13, 4, v0'); V('v_add_u32 v13, s27, v13')
    S('s_lshl_b32 s28, s26, 12'); V('v_add_u32 v15, s28, v13')
    b.barrier()
    for uu in range(4):
        b.ds_write('ds_write_b128', 15, FB + 4 * uu, 4, 1024 * uu)
    b.wait_lds(0)
    b.barrier()
    OF = 16
    for u in range(8):
        b.ds_read('ds_read_b128', OF + 4 * u, 4, 13, 1024 * u)
    b.wait_lds(0)
    OC = 48
    for u in range(8):
        s = 39 + u
        b.barrier()
        V(f'v_add_u32 v14, {pair(s)}, v4')
        items = []
        for t in range(14):
            def f(r, t=t, u=u):
                b.mfma(OC + 4 * t, r, OF + 4 * u, None if u == 0 else OC + 4 * t)
            items.append((32 * t, 32 * t + 16 * WOP, f))
        run_tr_step(items)
    V('v_lshlrev_b32 v13, 4, v0')
    if o.part == 'bf16':
        S('s_mul_i32 s27, s24, 7168')
        for tp in range(7):
            for q in range(4):
                a = OC + 8 * tp + 2 * q
                V(f'v_cvt_pk_bf16_f32 v{FB+4*tp+q}, v{a}, v{a+1}')
            if tp == 4: S('s_add_u32 s27, s27, 4096')
            b.buf_store(FB + 4 * tp, 4, 13, 36, 's27', (tp % 4) * 1024, o.stflags)
    else:
        S('s_mul_i32 s27, s24, 14336')
        for t in range(14):
            if t and t % 4 == 0: S('s_add_u32 s27, s27, 4096')
            b.buf_store(OC + 4 * t, 4, 13, 36, 's27', (t % 4) * 1024, o.stflags)
    if o.stamps:
        b.wait_vm(0)
        b.smem('s_memrealtime s[62:63]'); b.wait_smem()
        S('s_cmp_lg_u32 s24, 0'); S('s_cbranch_scc1 L_main_end')
        S('s_mov_b32 s36, s22'); S('s_mov_b32 s37, s23'); S('s_mov_b32 s38, 4096')
        V('v_mov_b32 v16, s60'); V('v_mov_b32 v17, s62')
        S('s_lshl_b32 s27, s2, 3'); V('v_mov_b32 v13, s27')
        V('v_cmp_eq_u32 vcc, 0, v0'); S('s_and_saveexec_b64 s[50:51], vcc')
        b.buf_store(16, 2, 13, 36, '0')
    S('s_endpgm')

    b.label('L_loader'); b.reset()
    S('s_sub_u32 s25, s24, 10')
    V('v_and_b32 v1, 31, v0'); V('v_lshlrev_b32 v1, 4, v1'); V('v_lshrrev_b32 v2, 5, v0')
    V('v_lshl_add_u32 v3, v2, 15, v1')
    V('v_lshl_add_u32 v1, v2, 12, v1')
    V('v_lshlrev_b32 v4, 4, v0')
    b.wait_smem()
    S('s_lshl_b32 s27, s8, 9')
    S('s_add_u32 s32, s18, s27'); S('s_addc_u32 s33, s19, 0'); S('s_sub_u32 s34, 3670016, s27'); S('s_mov_b32 s35, 0x00020000')
    S('s_lshl_b32 s27, s6, 3'); S('s_add_u32 s27, s27, s3'); S('s_lshl_b32 s27, s27, 19')
    S('s_add_u32 s36, s14, s27'); S('s_addc_u32 s37, s15, 0'); S('s_mov_b32 s38, 524288'); S('s_mov_b32 s39, 0x00020000')
    S('s_add_u32 s40, s16, s27'); S('s_addc_u32 s41, s17, 0'); S('s_mov_b32 s42, 524288'); S('s_mov_b32 s43, 0x00020000')
    S('s_mul_i32 s27, s8, 229376')
    S('s_add_u32 s44, s20, s27'); S('s_addc_u32 s45, s21, 0'); S('s_mov_b32 s46, 229376'); S('s_mov_b32 s47, 0x00020000')
    S(f's_mul_i32 s26, s25, {CH}')
    S('s_lshl_b32 s28, s25, 14')
    S('s_lshl_b32 s48, s25, 18')
    S(f's_mul_i32 s49, s25, {16*WOP}')
    S(f's_mul_i32 s50, s25, {16*896}')
    S('s_mov_b32 s30, s29')
    def issue_step(s):
        if s < 7:
            S('s_lshl_b32 s31, s30, 19'); S('s_add_u32 s31, s31, s48')
            for grp in range(2):
                for nn in range(8):
                    row = 16 * grp + ((nn & 3) | ((nn >> 2) << 3))
                    S(f's_add_u32 m0, s26, {pair(s) + grp * GRP + nn * BLK}')
                    if row: S(f's_add_u32 s52, s31, {row * 8192}')
                    b.dma(3, 32, 's52' if row else 's31', 0, o.wflags)
            S('s_add_u32 s30, s30, 1'); S('s_cmp_eq_u32 s30, 7'); S('s_cselect_b32 s30, 0, s30')
        elif s < 39:
            srd = 36 if s < 23 else 40
            rel = s - 7 if s < 23 else s - 23
            for grp in range(2):
                S(f's_add_u32 s31, s28, {rel * 32768 + grp * 8192}')
                for nn in range(8):
                    S(f's_add_u32 m0, s26, {pair(s) + grp * GRP + nn * BLK - nn * 512}')
                    b.dma(1, srd, 's31', nn * 512, o.kvflags)
        else:
            u = s - 39
            if u == 0: S('s_mov_b32 exec_hi, 0x00ffffff')
            for n in range(16):
                if n % 4 == 0: S(f's_add_u32 s31, s50, {32 * u * 896 + (n >> 2) * 3584}')
                S(f's_add_u32 m0, s49, {pair(s) + n * WOP - (n & 3) * 896}')
                b.dma(4, 44, 's31', (n & 3) * 896, o.wflags)
    for s in range(3): issue_step(s)
    for s in range(NSTEP):
        later = min(NSTEP - 1, s + 2) - s
        b.wait_vm(16 * later)
        b.barrier()
        if s + 3 < NSTEP: issue_step(s + 3)
        if s in (6, 38): b.barrier(); b.barrier()
        if s == 22: b.barrier()
    b.label('L_main_end')
    S('s_endpgm')
    main_v = max(b.maxv + 1, 168)
    assert b.maxv < 168, b.maxv
    main_txt = b.text()

    r = B(); S = r.salu; V = r.valu
    red = 'red_kernel'
    r.lines.append(f'.globl {red}\n.p2align 8\n.type {red},@function\n{red}:')
    if o.part == 'bf16':
        nwg = 280
        S(f's_cmp_ge_u32 s2, {nwg}'); S('s_cbranch_scc1 L_red_end')
        r.smem('s_load_dwordx2 s[4:5], s[0:1], 96'); r.smem('s_load_dwordx2 s[6:7], s[0:1], 80')
        V('v_lshrrev_b32 v1, 6, v0'); V('v_and_b32 v0, 63, v0'); V('v_readfirstlane_b32 s8, v1')
        S('s_lshl_b32 s9, s2, 2'); r.nop(2); S('s_add_u32 s9, s9, s8')
        S('s_mul_i32 s10, s9, 937'); S('s_lshr_b32 s10, s10, 16')
        S('s_mul_i32 s11, s10, 70'); S('s_sub_u32 s11, s9, s11')
        S('s_mul_i32 s12, s11, 37'); S('s_lshr_b32 s12, s12, 8')
        S('s_mul_i32 s13, s12, 7'); S('s_sub_u32 s13, s11, s13')
        S(f's_mul_i32 s14, s10, {16 * PART}')
        S('s_lshl_b32 s15, s11, 10'); S('s_add_u32 s14, s14, s15')
        V('v_lshlrev_b32 v2, 4, v0')
        r.wait_smem()
        S('s_add_u32 s16, s4, s14'); S('s_addc_u32 s17, s5, 0')
        if o.stamps: S('s_add_u32 s16, s16, 4096'); S('s_addc_u32 s17, s17, 0')
        S(f's_mov_b32 s18, {16 * PART}'); S('s_mov_b32 s19, 0x00020000')
        for w in range(16):
            S(f's_mov_b32 s20, {w * PART}')
            r.buf_load(8 + 4 * w, 4, 2, 16, 's20', 0, o.rdflags)
        S('s_and_b32 s21, s10, 7'); S('s_lshr_b32 s22, s10, 3')
        S('s_lshr_b32 s23, s12, 1'); S('s_and_b32 s24, s12, 1')
        S('s_mul_i32 s21, s21, 80'); S('s_lshl_b32 s23, s23, 4'); S('s_add_u32 s21, s21, s23'); S('s_mul_i32 s21, s21, 1792')
        S('s_mul_i32 s22, s22, 896'); S('s_mul_i32 s24, s24, 448'); S('s_lshl_b32 s25, s13, 6')
        S('s_add_u32 s21, s21, s22'); S('s_add_u32 s21, s21, s24'); S('s_add_u32 s21, s21, s25')
        V('v_and_b32 v3, 15, v0'); V('v_mul_u32_u24 v3, 1792, v3'); V('v_lshrrev_b32 v4, 4, v0'); V('v_lshl_add_u32 v3, v4, 3, v3')
        S('s_mov_b32 s28, s6'); S('s_mov_b32 s29, s7'); S('s_mov_b32 s30, 1146880'); S('s_mov_b32 s31, 0x00020000')
        AC = 72
        for w in range(16):
            for q in range(4):
                src = 8 + 4 * w + q
                if w == 0:
                    V(f'v_lshlrev_b32 v{AC+2*q}, 16, v{src}'); V(f'v_and_b32 v{AC+2*q+1}, 0xffff0000, v{src}')
                else:
                    V(f'v_lshlrev_b32 v5, 16, v{src}'); V(f'v_and_b32 v6, 0xffff0000, v{src}')
                    V(f'v_add_f32 v{AC+2*q}, v{AC+2*q}, v5'); V(f'v_add_f32 v{AC+2*q+1}, v{AC+2*q+1}, v6')
        for q in range(4): V(f'v_cvt_pk_bf16_f32 v{8+q}, v{AC+2*q}, v{AC+2*q+1}')
        r.buf_store(8, 2, 3, 28, 's21', 0); r.buf_store(10, 2, 3, 28, 's21', 32)
    else:
        nwg = 560
        S(f's_cmp_ge_u32 s2, {nwg}'); S('s_cbranch_scc1 L_red_end')
        r.smem('s_load_dwordx2 s[4:5], s[0:1], 96'); r.smem('s_load_dwordx2 s[6:7], s[0:1], 80')
        V('v_lshrrev_b32 v1, 6, v0'); V('v_and_b32 v0, 63, v0'); V('v_readfirstlane_b32 s8, v1')
        S('s_lshl_b32 s9, s2, 2'); r.nop(2); S('s_add_u32 s9, s9, s8')
        S('s_mul_i32 s10, s9, 7490'); S('s_lshr_b32 s10, s10, 20')
        S('s_mul_i32 s11, s10, 140'); S('s_sub_u32 s11, s9, s11')
        S('s_mul_i32 s12, s11, 147'); S('s_lshr_b32 s12, s12, 11')
        S('s_mul_i32 s13, s12, 14'); S('s_sub_u32 s13, s11, s13')
        S(f's_mul_i32 s14, s10, {16 * PART}')
        S('s_lshl_b32 s15, s11, 10'); S('s_add_u32 s14, s14, s15')
        V('v_lshlrev_b32 v2, 4, v0')
        r.wait_smem()
        S('s_add_u32 s16, s4, s14'); S('s_addc_u32 s17, s5, 0')
        if o.stamps: S('s_add_u32 s16, s16, 4096'); S('s_addc_u32 s17, s17, 0')
        S(f's_mov_b32 s18, {16 * PART}'); S('s_mov_b32 s19, 0x00020000')
        for w in range(16):
            S(f's_mov_b32 s20, {w * PART}')
            r.buf_load(8 + 4 * w, 4, 2, 16, 's20', 0, o.rdflags)
        S('s_and_b32 s21, s10, 7'); S('s_lshr_b32 s22, s10, 3')
        S('s_lshr_b32 s23, s12, 1'); S('s_and_b32 s24, s12, 1')
        S('s_mul_i32 s21, s21, 80'); S('s_lshl_b32 s23, s23, 4'); S('s_add_u32 s21, s21, s23'); S('s_mul_i32 s21, s21, 1792')
        S('s_mul_i32 s22, s22, 896'); S('s_mul_i32 s24, s24, 448'); S('s_lshl_b32 s25, s13, 5')
        S('s_add_u32 s21, s21, s22'); S('s_add_u32 s21, s21, s24'); S('s_add_u32 s21, s21, s25')
        V('v_and_b32 v3, 15, v0'); V('v_mul_u32_u24 v3, 1792, v3'); V('v_lshrrev_b32 v4, 4, v0'); V('v_lshl_add_u32 v3, v4, 3, v3')
        S('s_mov_b32 s28, s6'); S('s_mov_b32 s29, s7'); S('s_mov_b32 s30, 1146880'); S('s_mov_b32 s31, 0x00020000')
        for w in range(1, 16):
            for q in range(4):
                V(f'v_add_f32 v{8+q}, v{8+q}, v{8+4*w+q}')
        V('v_cvt_pk_bf16_f32 v8, v8, v9'); V('v_cvt_pk_bf16_f32 v9, v10, v11')
        r.buf_store(8, 2, 3, 28, 's21', 0)
    r.label('L_red_end')
    S('s_endpgm')
    red_txt = r.text()

    out = HEADER
    out += f'; @launch kernel={main} grid=(256,1,1) block=(768,1,1) lds={LDS_TOTAL}\n'
    out += f'; @launch kernel={red} grid=({nwg},1,1) block=(256,1,1) lds=0\n'
    out += '.amdgcn_target "amdgcn-amd-amdhsa--gfx950"\n.text\n'
    out += main_txt + red_txt
    out += kd(main, 168) + kd(red, 80, 40)
    return out

if __name__ == '__main__':
    ap = argparse.ArgumentParser()
    ap.add_argument('-o', default='v1.s')
    ap.add_argument('--part', default='bf16')
    ap.add_argument('--kvflags', default='nt')
    ap.add_argument('--wflags', default='')
    ap.add_argument('--stflags', default='')
    ap.add_argument('--rdflags', default='')
    ap.add_argument('--stamps', action='store_true')
    ap.add_argument('--rot', type=int, default=1)
    o = ap.parse_args()
    open(o.o, 'w').write(gen(o))
```

```python
import sys, argparse
from asmb import B, vr, sr

NAME = 'concat_heads__gqa_block_cached__gqa_block_cached__near_ridge'

HEADER = open('cdna_kernels/' + NAME + '.s.ref').read().split('; Override launch')[0]

PAIR = 33792; CH = 16896; GRP = 8448; BLK = 1056
XB = 3 * PAIR
MISC = 4 * PAIR
PB = MISC
MX = MISC + 20480
LDS_TOTAL = 163840
WOP = 928
NSTEP = 47
def pair(s): return ((s + 1) % 4) * PAIR

C_EXP = 0.0625 * 1.4426950408889634
import struct
def f32hex(x): return '0x%08x' % struct.unpack('<I', struct.pack('<f', x))[0]

def kd(name, vgpr, sgpr=96):
    return f'''.section .rodata,"a"
.p2align 6
.amdhsa_kernel {name}
  .amdhsa_next_free_vgpr {vgpr}
  .amdhsa_next_free_sgpr {sgpr}
  .amdhsa_accum_offset {(vgpr + 3) // 4 * 4}
  .amdhsa_group_segment_fixed_size 0
  .amdhsa_kernarg_size 104
  .amdhsa_user_sgpr_count 2
  .amdhsa_user_sgpr_kernarg_segment_ptr 1
  .amdhsa_system_sgpr_workgroup_id_x 1
.end_amdhsa_kernel
'''

def gen(o):
    PART = 71680 if o.part == 'bf16' else 143360
    b = B()
    S = b.salu; V = b.valu
    main = 'main_kernel'
    b.lines.append(f'.globl {main}\n.p2align 8\n.type {main},@function\n{main}:')
    S('s_cmp_ge_u32 s2, 256'); S('s_cbranch_scc1 L_main_end')
    nst = [0]
    def stamp():
        if o.stamps:
            k = nst[0]; nst[0] += 1
            assert k < 16
            b._emit(f's_memrealtime s[{60+2*k}:{61+2*k}]')
            b._emit('s_waitcnt lgkmcnt(0)'); b.lds_q = []
    stamp()
    S('s_and_b32 s3, s2, 7')
    S('s_lshr_b32 s4, s2, 3')
    S('s_and_b32 s5, s4, 1')
    S('s_lshr_b32 s6, s4, 1'); S('s_and_b32 s6, s6, 7')
    S('s_lshr_b32 s7, s4, 4')
    S('s_lshl_b32 s8, s3, 1'); S('s_add_u32 s8, s8, s5')
    S('s_mul_i32 s9, s7, 40')
    S('s_add_u32 s10, s0, s9'); S('s_addc_u32 s11, s1, 0')
    b.smem('s_load_dwordx8 s[12:19], s[10:11], 0')
    b.smem('s_load_dwordx2 s[20:21], s[10:11], 32')
    b.smem('s_load_dwordx2 s[22:23], s[0:1], 96')
    V('v_lshrrev_b32 v1, 6, v0')
    V('v_and_b32 v0, 63, v0')
    V('v_readfirstlane_b32 s24, v1')
    S('s_cmp_eq_u32 s6, 7'); S('s_cselect_b32 s29, 0, s6')
    if not o.rot:
        S('s_mov_b32 s29, 0')
    b.nop(2)
    S('s_cmp_ge_u32 s24, 10'); S('s_cbranch_scc1 L_loader')

    S('s_lshr_b32 s25, s24, 1')
    S('s_and_b32 s26, s24, 1')
    V('v_and_b32 v10, 15, v0')
    V('v_lshrrev_b32 v11, 4, v0')
    S('s_lshl_b32 s27, s25, 4')
    V('v_add_u32 v12, s27, v10')
    V('v_mul_u32_u24 v12, 896, v12')
    V('v_lshl_add_u32 v12, v11, 4, v12')
    b.wait_smem()
    S('s_mul_i32 s27, s6, 71680')
    S('s_add_u32 s32, s12, s27'); S('s_addc_u32 s33, s13, 0')
    S('s_mov_b32 s34, 71680'); S('s_mov_b32 s35, 0x00020000')
    XF = 48
    S('s_mov_b32 s30, s29')
    for s in range(7):
        S('s_lshl_b32 s31, s30, 7')
        b.buf_load(XF + 8 * s, 4, 12, 32, 's31', 0)
        b.buf_load(XF + 8 * s + 4, 4, 12, 32, 's31', 64)
        if s < 6:
            S('s_add_u32 s30, s30, 1'); S('s_cmp_eq_u32 s30, 7'); S('s_cselect_b32 s30, 0, s30')
    S(f's_mul_i32 s27, s2, {PART}')
    S('s_add_u32 s36, s22, s27'); S('s_addc_u32 s37, s23, 0')
    if o.stamps:
        S('s_add_u32 s36, s36, 16384'); S('s_addc_u32 s37, s37, 0')
    S(f's_mov_b32 s38, {PART}'); S('s_mov_b32 s39, 0x00020000')
    V('v_and_b32 v13, 7, v10'); V(f'v_mul_u32_u24 v13, {BLK}, v13')
    V('v_lshrrev_b32 v14, 3, v10'); V('v_lshl_add_u32 v13, v14, 9, v13')
    V('v_lshl_add_u32 v1, v11, 4, v13')
    S(f's_mul_i32 s27, s25, {GRP}'); S(f's_add_u32 s27, s27, {XB}')
    V('v_add_u32 v5, s27, v1')
    V('v_lshl_add_u32 v15, v11, 3, v13'); V('v_add_u32 v15, s27, v15')
    S('s_lshl_b32 s28, s26, 8')
    V('v_add_u32 v15, s28, v15')
    S(f's_mul_i32 s27, s26, {CH}')
    V('v_add_u32 v1, s27, v1')
    V('v_lshrrev_b32 v13, 2, v10'); V('v_and_b32 v14, 1, v11'); V('v_lshl_add_u32 v13, v14, 2, v13')
    V(f'v_mul_u32_u24 v13, {BLK}, v13')
    V('v_and_b32 v14, 3, v10'); V('v_lshl_add_u32 v13, v14, 3, v13')
    V('v_add_u32 v13, s28, v13')
    V('v_lshrrev_b32 v14, 1, v11')
    V('v_lshl_add_u32 v2, v14, 9, v13')
    V(f'v_mul_u32_u24 v14, {GRP}, v14'); V('v_add_u32 v3, v14, v13')
    V('v_lshrrev_b32 v13, 2, v10'); V('v_lshl_add_u32 v13, v11, 2, v13'); V(f'v_mul_u32_u24 v13, {WOP}, v13')
    V('v_and_b32 v14, 3, v10'); V('v_lshl_add_u32 v13, v14, 3, v13')
    S('s_mul_i32 s27, s26, 448'); V('v_add_u32 v4, s27, v13')
    S('s_lshl_b32 s27, s25, 11'); S(f's_add_u32 s27, s27, {PB}')
    V('v_lshlrev_b32 v8, 4, v0'); V('v_add_u32 v8, s27, v8')
    S('s_lshl_b32 s28, s26, 10'); V('v_add_u32 v9, s28, v8')
    S(f's_mov_b32 s40, {f32hex(C_EXP)}')

    FB = 112; NFB = 8
    ACC = 16
    fbi = [0]
    def next_fb():
        r = FB + 4 * (fbi[0] % NFB); fbi[0] += 1; return r

    def run_tr_step(items, ahead=5, between=None):
        regs = []
        def issue(k):
            r = next_fb(); regs.append(r)
            b.ds_read('ds_read_b64_tr_b16', r, 2, 14, items[k][0])
            b.ds_read('ds_read_b64_tr_b16', r + 2, 2, 14, items[k][1])
        for k in range(min(ahead, len(items))): issue(k)
        for k in range(len(items)):
            if k + ahead < len(items): issue(k + ahead)
            items[k][2](regs[k])
            if between: between(k)

    for s in range(7):
        b.barrier()
        if s in (0, 1): stamp()
        V(f'v_add_u32 v14, {pair(s)}, v3')
        items = []
        for ks in range(2):
            for t in range(8):
                def f(r, t=t, ks=ks, s=s):
                    first = (s == 0 and ks == 0)
                    b.mfma(ACC + 4 * t, r, XF + 8 * s + 4 * ks, None if first else ACC + 4 * t)
                items.append((ks * CH + 32 * t, ks * CH + 32 * t + 512, f))
        run_tr_step(items)
    stamp()
    b.barrier()
    for t in range(8):
        a = ACC + 4 * t; r = FB + 2 * t
        V(f'v_cvt_pk_bf16_f32 v{r}, v{a}, v{a+1}'); V(f'v_cvt_pk_bf16_f32 v{r+1}, v{a+2}, v{a+3}')
        b.ds_write('ds_write_b64', 15, r, 2, 32 * t)
    b.wait_lds(0)
    b.barrier()
    QF = 16
    for u in range(8):
        b.ds_read('ds_read_b128', QF + 4 * u, 4, 5, 64 * u)
    V('v_mov_b32 v6, 0xff800000'); V('v_mov_b32 v7, 0xff800000')
    b.wait_lds(0)

    SR = 48; A1 = 144
    def post(k):
        a = A1 + (k & 1) * 8; d = SR + 4 * k
        ops = []
        for q in range(4):
            ops.append(f'v_cvt_pk_bf16_f32 v{d+q}, v{a+2*q}, v{a+2*q+1}')
            m = 6 + (q & 1)
            ops.append(f'v_max3_f32 v{m}, v{m}, v{a+2*q}, v{a+2*q+1}')
        return ops
    for k in range(16):
        s = 7 + k
        b.barrier()
        if k in (0, 8): stamp()
        V(f'v_add_u32 v14, {pair(s)}, v1')
        a = A1 + (k & 1) * 8
        order = [(T, u) for u in range(8) for T in range(2)]
        regs = []
        def issue(n):
            T, u = order[n]; r = next_fb(); regs.append(r)
            b.ds_read('ds_read_b128', r, 4, 14, T * GRP + 64 * u)
        ahead = 7
        for n in range(ahead): issue(n)
        pend = post(k - 1) if k > 0 else []
        for n in range(16):
            T, u = order[n]
            b.mfma(a + 4 * T, regs[n], QF + 4 * u, None if u == 0 else a + 4 * T)
            if n + ahead < 16: issue(n + ahead)
            if pend and n >= 2: V(pend.pop(0))
        for p in pend: V(p)
    for p in post(15): V(p)
    stamp()
    V('v_max_f32 v6, v6, v7')
    S('s_lshl_b32 s27, s25, 9'); S(f's_add_u32 s27, s27, {MX}')
    V('v_lshlrev_b32 v13, 5, v10'); V('v_add_u32 v13, s27, v13')
    S('s_lshl_b32 s28, s26, 4'); V('v_lshl_add_u32 v14, v11, 2, v13'); V('v_add_u32 v14, s28, v14')
    b.ds_write('ds_write_b32', 14, 6, 1)
    b.wait_lds(0)
    b.barrier()
    b.ds_read('ds_read_b128', 144, 4, 13, 0); b.ds_read('ds_read_b128', 148, 4, 13, 16)
    V('v_max3_f32 v6, v144, v145, v146'); V('v_max3_f32 v7, v147, v148, v149')
    V('v_max3_f32 v6, v6, v150, v151'); V('v_max_f32 v6, v6, v7')
    V('v_cvt_pk_bf16_f32 v6, v6, v6'); V('v_lshlrev_b32 v6, 16, v6')
    V('v_mul_f32 v6, s40, v6'); V('v_sub_f32 v6, 0, v6')
    PF = 144; LA = 152; ON = 156; T0 = 160
    for q in range(4): V(f'v_mov_b32 v{ON+q}, 0x3f803f80')
    def softmax_ops(k):
        ops = []
        d = SR + 4 * k
        for q in range(4):
            ops.append(f'v_lshlrev_b32 v{T0+2*q}, 16, v{d+q}')
            ops.append(f'v_and_b32 v{T0+2*q+1}, 0xffff0000, v{d+q}')
        for q in range(8): ops.append(f'v_fma_f32 v{T0+q}, v{T0+q}, s40, v6')
        for q in range(8): ops.append(f'v_exp_f32 v{T0+q}, v{T0+q}')
        for q in range(4): ops.append(f'v_cvt_pk_bf16_f32 v{T0+q}, v{T0+2*q}, v{T0+2*q+1}')
        return ops
    for p in softmax_ops(0): V(p)
    b.ds_write('ds_write_b128', 9, T0, 4, 0)
    b.wait_lds(0)

    OA = 16
    for k in range(16):
        s = 23 + k
        b.barrier()
        if k in (0, 8): stamp()
        b.ds_read('ds_read_b128', PF, 4, 8, (k & 1) * 10240)
        b.ds_read('ds_read_b128', PF + 4, 4, 8, (k & 1) * 10240 + 1024)
        V(f'v_add_u32 v14, {pair(s)}, v2')
        pend = softmax_ops(k + 1) if k < 15 else []
        items = []
        for ks in range(2):
            for t in range(8):
                def f(r, t=t, ks=ks, k=k):
                    first = (k == 0 and ks == 0)
                    b.mfma(OA + 4 * t, r, PF + 4 * ks, None if first else OA + 4 * t)
                    if t == 7:
                        b.mfma(LA, ON, PF + 4 * ks, None if first else LA)
                items.append((ks * CH + 32 * t, ks * CH + 32 * t + GRP, f))
        def between(n):
            for _ in range(2):
                if pend: V(pend.pop(0))
        run_tr_step(items, ahead=5, between=between)
        for p in pend: V(p)
        if k < 15:
            b.ds_write('ds_write_b128', 9, T0, 4, ((k + 1) & 1) * 10240)
            b.wait_lds(0)
    stamp()
    V(f'v_rcp_f32 v7, v{LA}')
    for r in range(32): V(f'v_mul_f32 v{OA+r}, v{OA+r}, v7')
    for uu in range(4):
        for q in range(4):
            a = OA + 8 * uu + 2 * q
            V(f'v_cvt_pk_bf16_f32 v{FB+4*uu+q}, v{a}, v{a+1}')
    S('s_lshl_b32 s27, s25, 13'); S(f's_add_u32 s27, s27, {XB}')
    V('v_lshlrev_b32 v13, 4, v0'); V('v_add_u32 v13, s27, v13')
    S('s_lshl_b32 s28, s26, 12'); V('v_add_u32 v15, s28, v13')
    b.barrier()
    for uu in range(4):
        b.ds_write('ds_write_b128', 15, FB + 4 * uu, 4, 1024 * uu)
    b.wait_lds(0)
    b.barrier()
    OF = 16
    for u in range(8):
        b.ds_read('ds_read_b128', OF + 4 * u, 4, 13, 1024 * u)
    b.wait_lds(0)
    OC = 48
    for u in range(8):
        s = 39 + u
        b.barrier()
        if u in (0, 4): stamp()
        V(f'v_add_u32 v14, {pair(s)}, v4')
        items = []
        for t in range(14):
            def f(r, t=t, u=u):
                b.mfma(OC + 4 * t, r, OF + 4 * u, None if u == 0 else OC + 4 * t)
            items.append((32 * t, 32 * t + 16 * WOP, f))
        run_tr_step(items)
    stamp()
    V('v_lshlrev_b32 v13, 4, v0')
    if o.part == 'bf16':
        S('s_mul_i32 s27, s24, 7168')
        for tp in range(7):
            for q in range(4):
                a = OC + 8 * tp + 2 * q
                V(f'v_cvt_pk_bf16_f32 v{FB+4*tp+q}, v{a}, v{a+1}')
            if tp == 4: S('s_add_u32 s27, s27, 4096')
            b.buf_store(FB + 4 * tp, 4, 13, 36, 's27', (tp % 4) * 1024, o.stflags)
    else:
        S('s_mul_i32 s27, s24, 14336')
        for t in range(14):
            if t and t % 4 == 0: S('s_add_u32 s27, s27, 4096')
            b.buf_store(OC + 4 * t, 4, 13, 36, 's27', (t % 4) * 1024, o.stflags)
    if o.stamps:
        b.wait_vm(0)
        stamp()
        S('s_cmp_lg_u32 s24, 0'); S('s_cbranch_scc1 L_main_end')
        S('s_mov_b32 s36, s22'); S('s_mov_b32 s37, s23'); S('s_mov_b32 s38, 16384')
        for k in range(16):
            V(f'v_mov_b32 v{16+k}, s{60+2*min(k, nst[0]-1)}')
        S('s_lshl_b32 s27, s2, 6'); V('v_mov_b32 v13, s27')
        V('v_cmp_eq_u32 vcc, 0, v0'); S('s_and_saveexec_b64 s[50:51], vcc')
        for k in range(4):
            b.buf_store(16 + 4 * k, 4, 13, 36, '0', 16 * k)
    S('s_endpgm')

    b.label('L_loader'); b.reset()
    S('s_sub_u32 s25, s24, 10')
    V('v_and_b32 v1, 31, v0'); V('v_lshlrev_b32 v1, 4, v1'); V('v_lshrrev_b32 v2, 5, v0')
    V('v_lshl_add_u32 v3, v2, 15, v1')
    V('v_lshl_add_u32 v1, v2, 12, v1')
    V('v_lshlrev_b32 v4, 4, v0')
    b.wait_smem()
    S('s_lshl_b32 s27, s8, 9')
    S('s_add_u32 s32, s18, s27'); S('s_addc_u32 s33, s19, 0'); S('s_sub_u32 s34, 3670016, s27'); S('s_mov_b32 s35, 0x00020000')
    S('s_lshl_b32 s27, s6, 3'); S('s_add_u32 s27, s27, s3'); S('s_lshl_b32 s27, s27, 19')
    S('s_add_u32 s36, s14, s27'); S('s_addc_u32 s37, s15, 0'); S('s_mov_b32 s38, 524288'); S('s_mov_b32 s39, 0x00020000')
    S('s_add_u32 s40, s16, s27'); S('s_addc_u32 s41, s17, 0'); S('s_mov_b32 s42, 524288'); S('s_mov_b32 s43, 0x00020000')
    S('s_mul_i32 s27, s8, 229376')
    S('s_add_u32 s44, s20, s27'); S('s_addc_u32 s45, s21, 0'); S('s_mov_b32 s46, 229376'); S('s_mov_b32 s47, 0x00020000')
    S(f's_mul_i32 s26, s25, {CH}')
    S('s_lshl_b32 s28, s25, 14')
    S('s_lshl_b32 s48, s25, 18')
    S(f's_mul_i32 s49, s25, {16*WOP}')
    S(f's_mul_i32 s50, s25, {16*896}')
    S('s_mov_b32 s30, s29')
    def issue_step(s):
        if s < 7:
            S('s_lshl_b32 s31, s30, 19'); S('s_add_u32 s31, s31, s48')
            for grp in range(2):
                for nn in range(8):
                    row = 16 * grp + ((nn & 3) | ((nn >> 2) << 3))
                    S(f's_add_u32 m0, s26, {pair(s) + grp * GRP + nn * BLK}')
                    if row: S(f's_add_u32 s52, s31, {row * 8192}')
                    b.dma(3, 32, 's52' if row else 's31', 0, o.wflags)
            S('s_add_u32 s30, s30, 1'); S('s_cmp_eq_u32 s30, 7'); S('s_cselect_b32 s30, 0, s30')
        elif s < 39:
            srd = 36 if s < 23 else 40
            rel = s - 7 if s < 23 else s - 23
            for grp in range(2):
                S(f's_add_u32 s31, s28, {rel * 32768 + grp * 8192}')
                for nn in range(8):
                    S(f's_add_u32 m0, s26, {pair(s) + grp * GRP + nn * BLK - nn * 512}')
                    b.dma(1, srd, 's31', nn * 512, o.kvflags)
        else:
            u = s - 39
            if u == 0: S('s_mov_b32 exec_hi, 0x00ffffff')
            for n in range(16):
                if n % 4 == 0: S(f's_add_u32 s31, s50, {32 * u * 896 + (n >> 2) * 3584}')
                S(f's_add_u32 m0, s49, {pair(s) + n * WOP - (n & 3) * 896}')
                b.dma(4, 44, 's31', (n & 3) * 896, o.wflags)
    for s in range(3): issue_step(s)
    for s in range(NSTEP):
        later = min(NSTEP - 1, s + 2) - s
        b.wait_vm(16 * later)
        b.barrier()
        if s + 3 < NSTEP: issue_step(s + 3)
        if s in (6, 38): b.barrier(); b.barrier()
        if s == 22: b.barrier()
    b.label('L_main_end')
    S('s_endpgm')
    main_v = max(b.maxv + 1, 168)
    assert b.maxv < 168, b.maxv
    main_txt = b.text()

    r = B(); S = r.salu; V = r.valu
    red = 'red_kernel'
    r.lines.append(f'.globl {red}\n.p2align 8\n.type {red},@function\n{red}:')
    if o.part == 'bf16':
        nwg = 280
        S(f's_cmp_ge_u32 s2, {nwg}'); S('s_cbranch_scc1 L_red_end')
        r.smem('s_load_dwordx2 s[4:5], s[0:1], 96'); r.smem('s_load_dwordx2 s[6:7], s[0:1], 80')
        V('v_lshrrev_b32 v1, 6, v0'); V('v_and_b32 v0, 63, v0'); V('v_readfirstlane_b32 s8, v1')
        S('s_lshl_b32 s9, s2, 2'); r.nop(2); S('s_add_u32 s9, s9, s8')
        S('s_mul_i32 s10, s9, 937'); S('s_lshr_b32 s10, s10, 16')
        S('s_mul_i32 s11, s10, 70'); S('s_sub_u32 s11, s9, s11')
        S('s_mul_i32 s12, s11, 37'); S('s_lshr_b32 s12, s12, 8')
        S('s_mul_i32 s13, s12, 7'); S('s_sub_u32 s13, s11, s13')
        S(f's_mul_i32 s14, s10, {16 * PART}')
        S('s_lshl_b32 s15, s11, 10'); S('s_add_u32 s14, s14, s15')
        V('v_lshlrev_b32 v2, 4, v0')
        r.wait_smem()
        S('s_add_u32 s16, s4, s14'); S('s_addc_u32 s17, s5, 0')
        if o.stamps: S('s_add_u32 s16, s16, 16384'); S('s_addc_u32 s17, s17, 0')
        S(f's_mov_b32 s18, {16 * PART}'); S('s_mov_b32 s19, 0x00020000')
        for w in range(16):
            S(f's_mov_b32 s20, {w * PART}')
            r.buf_load(8 + 4 * w, 4, 2, 16, 's20', 0, o.rdflags)
        S('s_and_b32 s21, s10, 7'); S('s_lshr_b32 s22, s10, 3')
        S('s_lshr_b32 s23, s12, 1'); S('s_and_b32 s24, s12, 1')
        S('s_mul_i32 s21, s21, 80'); S('s_lshl_b32 s23, s23, 4'); S('s_add_u32 s21, s21, s23'); S('s_mul_i32 s21, s21, 1792')
        S('s_mul_i32 s22, s22, 896'); S('s_mul_i32 s24, s24, 448'); S('s_lshl_b32 s25, s13, 6')
        S('s_add_u32 s21, s21, s22'); S('s_add_u32 s21, s21, s24'); S('s_add_u32 s21, s21, s25')
        V('v_and_b32 v3, 15, v0'); V('v_mul_u32_u24 v3, 1792, v3'); V('v_lshrrev_b32 v4, 4, v0'); V('v_lshl_add_u32 v3, v4, 3, v3')
        S('s_mov_b32 s28, s6'); S('s_mov_b32 s29, s7'); S('s_mov_b32 s30, 1146880'); S('s_mov_b32 s31, 0x00020000')
        AC = 72
        for w in range(16):
            for q in range(4):
                src = 8 + 4 * w + q
                if w == 0:
                    V(f'v_lshlrev_b32 v{AC+2*q}, 16, v{src}'); V(f'v_and_b32 v{AC+2*q+1}, 0xffff0000, v{src}')
                else:
                    V(f'v_lshlrev_b32 v5, 16, v{src}'); V(f'v_and_b32 v6, 0xffff0000, v{src}')
                    V(f'v_add_f32 v{AC+2*q}, v{AC+2*q}, v5'); V(f'v_add_f32 v{AC+2*q+1}, v{AC+2*q+1}, v6')
        for q in range(4): V(f'v_cvt_pk_bf16_f32 v{8+q}, v{AC+2*q}, v{AC+2*q+1}')
        r.buf_store(8, 2, 3, 28, 's21', 0); r.buf_store(10, 2, 3, 28, 's21', 32)
    else:
        nwg = 560
        S(f's_cmp_ge_u32 s2, {nwg}'); S('s_cbranch_scc1 L_red_end')
        r.smem('s_load_dwordx2 s[4:5], s[0:1], 96'); r.smem('s_load_dwordx2 s[6:7], s[0:1], 80')
        V('v_lshrrev_b32 v1, 6, v0'); V('v_and_b32 v0, 63, v0'); V('v_readfirstlane_b32 s8, v1')
        S('s_lshl_b32 s9, s2, 2'); r.nop(2); S('s_add_u32 s9, s9, s8')
        S('s_mul_i32 s10, s9, 7490'); S('s_lshr_b32 s10, s10, 20')
        S('s_mul_i32 s11, s10, 140'); S('s_sub_u32 s11, s9, s11')
        S('s_mul_i32 s12, s11, 147'); S('s_lshr_b32 s12, s12, 11')
        S('s_mul_i32 s13, s12, 14'); S('s_sub_u32 s13, s11, s13')
        S(f's_mul_i32 s14, s10, {16 * PART}')
        S('s_lshl_b32 s15, s11, 10'); S('s_add_u32 s14, s14, s15')
        V('v_lshlrev_b32 v2, 4, v0')
        r.wait_smem()
        S('s_add_u32 s16, s4, s14'); S('s_addc_u32 s17, s5, 0')
        if o.stamps: S('s_add_u32 s16, s16, 16384'); S('s_addc_u32 s17, s17, 0')
        S(f's_mov_b32 s18, {16 * PART}'); S('s_mov_b32 s19, 0x00020000')
        for w in range(16):
            S(f's_mov_b32 s20, {w * PART}')
            r.buf_load(8 + 4 * w, 4, 2, 16, 's20', 0, o.rdflags)
        S('s_and_b32 s21, s10, 7'); S('s_lshr_b32 s22, s10, 3')
        S('s_lshr_b32 s23, s12, 1'); S('s_and_b32 s24, s12, 1')
        S('s_mul_i32 s21, s21, 80'); S('s_lshl_b32 s23, s23, 4'); S('s_add_u32 s21, s21, s23'); S('s_mul_i32 s21, s21, 1792')
        S('s_mul_i32 s22, s22, 896'); S('s_mul_i32 s24, s24, 448'); S('s_lshl_b32 s25, s13, 5')
        S('s_add_u32 s21, s21, s22'); S('s_add_u32 s21, s21, s24'); S('s_add_u32 s21, s21, s25')
        V('v_and_b32 v3, 15, v0'); V('v_mul_u32_u24 v3, 1792, v3'); V('v_lshrrev_b32 v4, 4, v0'); V('v_lshl_add_u32 v3, v4, 3, v3')
        S('s_mov_b32 s28, s6'); S('s_mov_b32 s29, s7'); S('s_mov_b32 s30, 1146880'); S('s_mov_b32 s31, 0x00020000')
        for w in range(1, 16):
            for q in range(4):
                V(f'v_add_f32 v{8+q}, v{8+q}, v{8+4*w+q}')
        V('v_cvt_pk_bf16_f32 v8, v8, v9'); V('v_cvt_pk_bf16_f32 v9, v10, v11')
        r.buf_store(8, 2, 3, 28, 's21', 0)
    r.label('L_red_end')
    S('s_endpgm')
    red_txt = r.text()

    out = HEADER
    out += f'; @launch kernel={main} grid=(256,1,1) block=(768,1,1) lds={LDS_TOTAL}\n'
    out += f'; @launch kernel={red} grid=({nwg},1,1) block=(256,1,1) lds=0\n'
    out += '.amdgcn_target "amdgcn-amd-amdhsa--gfx950"\n.text\n'
    out += main_txt + red_txt
    out += kd(main, 168) + kd(red, 80, 40)
    return out

if __name__ == '__main__':
    ap = argparse.ArgumentParser()
    ap.add_argument('-o', default='v1.s')
    ap.add_argument('--part', default='bf16')
    ap.add_argument('--kvflags', default='nt')
    ap.add_argument('--wflags', default='')
    ap.add_argument('--stflags', default='')
    ap.add_argument('--rdflags', default='')
    ap.add_argument('--stamps', action='store_true')
    ap.add_argument('--rot', type=int, default=1)
    o = ap.parse_args()
    open(o.o, 'w').write(gen(o))
```

```python
import re

_RV = re.compile(r'\bv\[(\d+):(\d+)\]|\bv(\d+)\b')
_RS = re.compile(r'\bs\[(\d+):(\d+)\]|\bs(\d+)\b|\b(vcc|m0|exec)\b')

def vregs(op):
    out = []
    for m in _RV.finditer(op):
        if m.group(3) is not None:
            out.append(int(m.group(3)))
        else:
            out.extend(range(int(m.group(1)), int(m.group(2)) + 1))
    return out

def sregs(op):
    out = []
    for m in _RS.finditer(op):
        if m.group(4):
            out.append(m.group(4))
        elif m.group(3) is not None:
            out.append(int(m.group(3)))
        else:
            out.extend(range(int(m.group(1)), int(m.group(2)) + 1))
    return out

def vr(a, n=1):
    return f'v{a}' if n == 1 else f'v[{a}:{a+n-1}]'

def sr(a, n=1):
    return f's{a}' if n == 1 else f's[{a}:{a+n-1}]'

TRANS = ('v_exp_f32', 'v_log_f32', 'v_rcp_f32', 'v_rsq_f32', 'v_sqrt_f32', 'v_sin_f32', 'v_cos_f32')

class B:
    def __init__(self):
        self.lines = []
        self.frozen = False
        self.reset()
        self.maxv = 0

    def reset(self):
        self.n = 100
        self.w_valu = {}
        self.w_trans = {}
        self.w_mfma = {}
        self.r_mfmac = {}
        self.w_sgpr_valu = {}
        self.w_m0 = -100
        self.st_data = {}
        self.lds_q = []
        self.vm_q = []
        self.sm_pending = False

    def _emit(self, text, states=1):
        self.lines.append('  ' + text)
        if not self.frozen:
            self.n += states

    def comment(self, t):
        self.lines.append('  ; ' + t)

    def label(self, name):
        self.lines.append(name + ':')

    def nop(self, k):
        while k > 0:
            c = min(k, 16)
            self._emit(f's_nop {c-1}', c)
            k -= c

    def _need(self, idx, dist):
        gap = self.n - idx - 1
        if gap < dist:
            self.nop(dist - gap)

    def _track(self, regs):
        for r in regs:
            if r > self.maxv:
                self.maxv = r

    def wait_lds(self, n):
        if len(self.lds_q) > n:
            self._emit(f's_waitcnt lgkmcnt({n})')
            self.lds_q = self.lds_q[len(self.lds_q) - n:] if n else []

    def wait_vm(self, n, force=False):
        if len(self.vm_q) > n or force:
            self._emit(f's_waitcnt vmcnt({n})')
            self.vm_q = self.vm_q[len(self.vm_q) - n:] if n else []

    def _auto_wait(self, regs):
        rs = set(regs)
        for q, fn in ((self.lds_q, self.wait_lds), (self.vm_q, self.wait_vm)):
            last = -1
            for i, d in enumerate(q):
                if d & rs:
                    last = i
            if last >= 0:
                fn(len(q) - 1 - last)

    def _mfma_dep(self, regs, dist=8):
        for r in regs:
            if r in self.w_mfma:
                idx, rng = self.w_mfma[r]
                big = (rng[1] - rng[0] + 1) == 16
                self._need(idx, dist + (4 if big else 0))

    def salu(self, text):
        op = text.split()[0]
        if 'm0' in text.split(',')[0]:
            self._emit(text)
            self.w_m0 = self.n - 1
            return
        self._emit(text)

    def smem(self, text):
        self._emit(text)
        self.sm_pending = True

    def wait_smem(self):
        self._emit('s_waitcnt lgkmcnt(0)')
        self.lds_q = []
        self.sm_pending = False

    def barrier(self):
        self._emit('s_barrier')

    def valu(self, text):
        op, rest = text.split(None, 1)
        ops = [o.strip() for o in rest.split(',')]
        base = op.replace('_e32', '').replace('_e64', '')
        if base.startswith('v_cmp'):
            dv, ds_, srcs = [], sregs(ops[0]), ops[1:]
        elif base in ('v_readfirstlane_b32', 'v_readlane_b32'):
            dv, ds_, srcs = [], sregs(ops[0]), ops[1:]
        elif base.startswith('v_permlane') and 'swap' in base:
            dv, ds_, srcs = vregs(ops[0]) + vregs(ops[1]), [], ops
        else:
            dv, ds_, srcs = vregs(ops[0]), [], ops[1:]
            if base in ('v_fmac_f32',):
                srcs = ops
        rv = [r for s in srcs for r in vregs(s)]
        rs = [r for s in srcs for r in sregs(s)]
        self._track(dv + rv)
        self._auto_wait(rv + dv)
        self._mfma_dep(rv + dv, 8)
        for r in dv:
            if r in self.r_mfmac:
                self._need(self.r_mfmac[r][0], self.r_mfmac[r][1])
            if r in self.st_data:
                self._need(self.st_data[r], 2)
        is_trans = base in TRANS
        for r in rv:
            if r in self.w_trans and not is_trans:
                self._need(self.w_trans[r], 1)
            if base in ('v_readfirstlane_b32', 'v_readlane_b32') and r in self.w_valu:
                self._need(self.w_valu[r], 1)
            if (base.startswith('v_permlane') or 'dpp' in text or 'row_' in text) and r in self.w_valu:
                self._need(self.w_valu[r], 2)
        for s in rs:
            if s in self.w_sgpr_valu:
                self._need(self.w_sgpr_valu[s], 2)
        self._emit(text)
        idx = self.n - 1
        for r in dv:
            self.w_valu[r] = idx
            if is_trans:
                self.w_trans[r] = idx
            else:
                self.w_trans.pop(r, None)
            self.w_mfma.pop(r, None)
        for s in ds_:
            self.w_sgpr_valu[s] = idx

    def mfma(self, d, a, b, c, op='v_mfma_f32_16x16x32_bf16', dn=4):
        D = list(range(d, d + dn)); A = list(range(a, a + 4)); Bv = list(range(b, b + 4))
        C = [] if c is None else list(range(c, c + dn))
        self._track(D + A + Bv + C)
        self._auto_wait(A + Bv + C + D)
        for r in A + Bv + C:
            if r in self.w_valu:
                self._need(self.w_valu[r], 2)
        self._mfma_dep(A + Bv, 8)
        for r in C:
            if r in self.w_mfma:
                idx, rng = self.w_mfma[r]
                if rng != (c, c + dn - 1):
                    self._need(idx, 10)
        if c != d:
            for r in D:
                if r in self.w_mfma:
                    self._need(self.w_mfma[r][0], 12)
        cs = '0' if c is None else vr(c, dn)
        self._emit(f'{op} {vr(d, dn)}, {vr(a, 4)}, {vr(b, 4)}, {cs}')
        idx = self.n - 1
        for r in D:
            self.w_mfma[r] = (idx, (d, d + dn - 1))
            self.w_valu.pop(r, None); self.w_trans.pop(r, None)
        for r in C:
            self.r_mfmac[r] = (idx, 7 if dn == 16 else 3)

    def _lds_cap(self):
        if len(self.lds_q) >= 15:
            self.wait_lds(14)

    def ds_read(self, op, dst, n, addr, offset=0):
        D = list(range(dst, dst + n))
        assert 0 <= offset < 65536, offset
        self._track(D + [addr])
        self._auto_wait(D + [addr])
        self._mfma_dep(D + [addr], 8)
        self._lds_cap()
        self._emit(f'{op} {vr(dst, n)}, v{addr}' + (f' offset:{offset}' if offset else ''))
        self.lds_q.append(set(D))
        for r in D:
            self.w_valu.pop(r, None); self.w_trans.pop(r, None); self.w_mfma.pop(r, None)

    def ds_write(self, op, addr, src, n, offset=0):
        S = list(range(src, src + n))
        assert 0 <= offset < 65536, offset
        self._track(S + [addr])
        self._auto_wait(S + [addr])
        self._mfma_dep(S + [addr], 8)
        self._lds_cap()
        self._emit(f'{op} v{addr}, {vr(src, n)}' + (f' offset:{offset}' if offset else ''))
        self.lds_q.append(set())

    def _vmem_sgpr(self, text):
        for s in sregs(text):
            if s in self.w_sgpr_valu:
                self._need(self.w_sgpr_valu[s], 5)

    def _vm_cap(self):
        if len(self.vm_q) >= 63:
            self.wait_vm(62)

    def buf_load(self, dst, n, voff, srd, soff, offset=0, flags=''):
        D = list(range(dst, dst + n))
        op = {1: 'buffer_load_dword', 2: 'buffer_load_dwordx2', 4: 'buffer_load_dwordx4'}[n]
        assert 0 <= offset < 4096
        self._track(D + [voff])
        self._auto_wait(D + [voff])
        self._mfma_dep(D + [voff], 8)
        t = f'{op} {vr(dst, n)}, v{voff}, {sr(srd, 4)}, {soff} offen' + (f' offset:{offset}' if offset else '') + (f' {flags}' if flags else '')
        self._vmem_sgpr(t); self._vm_cap()
        self._emit(t)
        self.vm_q.append(set(D))
        for r in D:
            self.w_valu.pop(r, None); self.w_trans.pop(r, None); self.w_mfma.pop(r, None)

    def buf_store(self, src, n, voff, srd, soff, offset=0, flags=''):
        S = list(range(src, src + n))
        op = {1: 'buffer_store_dword', 2: 'buffer_store_dwordx2', 4: 'buffer_store_dwordx4'}[n]
        assert 0 <= offset < 4096
        self._track(S + [voff])
        self._auto_wait(S + [voff])
        self._mfma_dep(S + [voff], 8)
        t = f'{op} {vr(src, n)}, v{voff}, {sr(srd, 4)}, {soff} offen' + (f' offset:{offset}' if offset else '') + (f' {flags}' if flags else '')
        self._vmem_sgpr(t); self._vm_cap()
        self._emit(t)
        self.vm_q.append(set())
        if n >= 3:
            for r in S:
                self.st_data[r] = self.n - 1

    def wait_tag(self, tag):
        last = -1
        for i, d in enumerate(self.vm_q):
            if tag in d: last = i
        if last >= 0:
            self.wait_vm(len(self.vm_q) - 1 - last)

    def dma(self, voff, srd, soff, offset=0, flags='', tag=None):
        assert 0 <= offset < 4096
        self._track([voff])
        self._auto_wait([voff])
        self._need(self.w_m0, 1)
        t = f'buffer_load_dwordx4 v{voff}, {sr(srd, 4)}, {soff} offen' + (f' offset:{offset}' if offset else '') + (f' {flags}' if flags else '') + ' lds'
        self._vmem_sgpr(t); self._vm_cap()
        self._emit(t)
        self.vm_q.append(set() if tag is None else {tag})

    def mfma32(self, d, a, b, c):
        self.mfma(d, a, b, c, op='v_mfma_f32_32x32x16_bf16', dn=16)

    def text(self):
        return '\n'.join(self.lines) + '\n'
```

```python
import sys, argparse
from asmb import B, vr, sr

NAME = 'concat_heads__gqa_block_cached__gqa_block_cached__near_ridge'

HEADER = open('cdna_kernels/' + NAME + '.s.ref').read().split('; Override launch')[0]

PAIR = 33792; CH = 16896; GRP = 8448; BLK = 1056
XB = 3 * PAIR
MISC = 4 * PAIR
PB = MISC
MX = MISC + 20480
LDS_TOTAL = 163840
WOP = 928
NSTEP = 47
def pair(s): return ((s + 1) % 4) * PAIR

C_EXP = 0.0625 * 1.4426950408889634
import struct
def f32hex(x): return '0x%08x' % struct.unpack('<I', struct.pack('<f', x))[0]

def kd(name, vgpr, sgpr=96):
    return f'''.section .rodata,"a"
.p2align 6
.amdhsa_kernel {name}
  .amdhsa_next_free_vgpr {vgpr}
  .amdhsa_next_free_sgpr {sgpr}
  .amdhsa_accum_offset {(vgpr + 3) // 4 * 4}
  .amdhsa_group_segment_fixed_size 0
  .amdhsa_kernarg_size 104
  .amdhsa_user_sgpr_count 2
  .amdhsa_user_sgpr_kernarg_segment_ptr 1
  .amdhsa_system_sgpr_workgroup_id_x 1
.end_amdhsa_kernel
'''

def gen(o):
    PART = 71680 if o.part == 'bf16' else 143360
    b = B()
    S = b.salu; V = b.valu
    main = 'main_kernel'
    b.lines.append(f'.globl {main}\n.p2align 8\n.type {main},@function\n{main}:')
    S('s_cmp_ge_u32 s2, 256'); S('s_cbranch_scc1 L_main_end')
    nst = [0]
    def stamp():
        if o.stamps:
            k = nst[0]; nst[0] += 1
            assert k < 16
            b._emit(f's_memrealtime s[{60+2*k}:{61+2*k}]')
            b._emit('s_waitcnt lgkmcnt(0)'); b.lds_q = []
    stamp()
    S('s_and_b32 s3, s2, 7')
    S('s_lshr_b32 s4, s2, 3')
    S('s_and_b32 s5, s4, 1')
    S('s_lshr_b32 s6, s4, 1'); S('s_and_b32 s6, s6, 7')
    S('s_lshr_b32 s7, s4, 4')
    S('s_lshl_b32 s8, s3, 1'); S('s_add_u32 s8, s8, s5')
    S('s_mul_i32 s9, s7, 40')
    S('s_add_u32 s10, s0, s9'); S('s_addc_u32 s11, s1, 0')
    b.smem('s_load_dwordx8 s[12:19], s[10:11], 0')
    b.smem('s_load_dwordx2 s[20:21], s[10:11], 32')
    b.smem('s_load_dwordx2 s[22:23], s[0:1], 96')
    V('v_lshrrev_b32 v1, 6, v0')
    V('v_and_b32 v0, 63, v0')
    V('v_readfirstlane_b32 s24, v1')
    S('s_cmp_eq_u32 s6, 7'); S('s_cselect_b32 s29, 0, s6')
    if not o.rot:
        S('s_mov_b32 s29, 0')
    b.nop(2)
    S('s_cmp_ge_u32 s24, 10'); S('s_cbranch_scc1 L_loader')

    S('s_lshr_b32 s25, s24, 1')
    S('s_and_b32 s26, s24, 1')
    V('v_and_b32 v10, 15, v0')
    V('v_lshrrev_b32 v11, 4, v0')
    S('s_lshl_b32 s27, s25, 4')
    V('v_add_u32 v12, s27, v10')
    V('v_mul_u32_u24 v12, 896, v12')
    V('v_lshl_add_u32 v12, v11, 4, v12')
    b.wait_smem()
    S('s_mul_i32 s27, s6, 71680')
    S('s_add_u32 s32, s12, s27'); S('s_addc_u32 s33, s13, 0')
    S('s_mov_b32 s34, 71680'); S('s_mov_b32 s35, 0x00020000')
    XF = 48
    S('s_mov_b32 s30, s29')
    for s in range(7):
        S('s_lshl_b32 s31, s30, 7')
        b.buf_load(XF + 8 * s, 4, 12, 32, 's31', 0)
        b.buf_load(XF + 8 * s + 4, 4, 12, 32, 's31', 64)
        if s < 6:
            S('s_add_u32 s30, s30, 1'); S('s_cmp_eq_u32 s30, 7'); S('s_cselect_b32 s30, 0, s30')
    S(f's_mul_i32 s27, s2, {PART}')
    S('s_add_u32 s36, s22, s27'); S('s_addc_u32 s37, s23, 0')
    if o.stamps:
        S('s_add_u32 s36, s36, 16384'); S('s_addc_u32 s37, s37, 0')
    S(f's_mov_b32 s38, {PART}'); S('s_mov_b32 s39, 0x00020000')
    V('v_and_b32 v13, 7, v10'); V(f'v_mul_u32_u24 v13, {BLK}, v13')
    V('v_lshrrev_b32 v14, 3, v10'); V('v_lshl_add_u32 v13, v14, 9, v13')
    V('v_lshl_add_u32 v1, v11, 4, v13')
    S(f's_mul_i32 s27, s25, {GRP}'); S(f's_add_u32 s27, s27, {XB}')
    V('v_add_u32 v5, s27, v1')
    V('v_lshl_add_u32 v15, v11, 3, v13'); V('v_add_u32 v15, s27, v15')
    S('s_lshl_b32 s28, s26, 8')
    V('v_add_u32 v15, s28, v15')
    S(f's_mul_i32 s27, s26, {CH}')
    V('v_add_u32 v1, s27, v1')
    V('v_lshrrev_b32 v13, 2, v10'); V('v_and_b32 v14, 1, v11'); V('v_lshl_add_u32 v13, v14, 2, v13')
    V(f'v_mul_u32_u24 v13, {BLK}, v13')
    V('v_and_b32 v14, 3, v10'); V('v_lshl_add_u32 v13, v14, 3, v13')
    V('v_add_u32 v13, s28, v13')
    V('v_lshrrev_b32 v14, 1, v11')
    V('v_lshl_add_u32 v2, v14, 9, v13')
    V(f'v_mul_u32_u24 v14, {GRP}, v14'); V('v_add_u32 v3, v14, v13')
    V('v_lshrrev_b32 v13, 2, v10'); V('v_lshl_add_u32 v13, v11, 2, v13'); V(f'v_mul_u32_u24 v13, {WOP}, v13')
    V('v_and_b32 v14, 3, v10'); V('v_lshl_add_u32 v13, v14, 3, v13')
    S('s_mul_i32 s27, s26, 448'); V('v_add_u32 v4, s27, v13')
    S('s_lshl_b32 s27, s25, 11'); S(f's_add_u32 s27, s27, {PB}')
    V('v_lshlrev_b32 v8, 4, v0'); V('v_add_u32 v8, s27, v8')
    S('s_lshl_b32 s28, s26, 10'); V('v_add_u32 v9, s28, v8')
    S(f's_mov_b32 s40, {f32hex(C_EXP)}')

    FB = 112; NFB = 8
    ACC = 16
    fbi = [0]
    def next_fb():
        r = FB + 4 * (fbi[0] % NFB); fbi[0] += 1; return r

    def run_tr_step(items, ahead=5, between=None):
        regs = []
        def issue(k):
            r = next_fb(); regs.append(r)
            b.ds_read('ds_read_b64_tr_b16', r, 2, 14, items[k][0])
            b.ds_read('ds_read_b64_tr_b16', r + 2, 2, 14, items[k][1])
        for k in range(min(ahead, len(items))): issue(k)
        for k in range(len(items)):
            if k + ahead < len(items): issue(k + ahead)
            items[k][2](regs[k])
            if between: between(k)

    for s in range(7):
        b.barrier()
        if s in (0, 1): stamp()
        V(f'v_add_u32 v14, {pair(s)}, v3')
        items = []
        for ks in range(2):
            for t in range(8):
                def f(r, t=t, ks=ks, s=s):
                    first = (s == 0 and ks == 0)
                    b.mfma(ACC + 4 * t, r, XF + 8 * s + 4 * ks, None if first else ACC + 4 * t)
                items.append((ks * CH + 32 * t, ks * CH + 32 * t + 512, f))
        run_tr_step(items)
    stamp()
    b.barrier()
    for t in range(8):
        a = ACC + 4 * t; r = FB + 2 * t
        V(f'v_cvt_pk_bf16_f32 v{r}, v{a}, v{a+1}'); V(f'v_cvt_pk_bf16_f32 v{r+1}, v{a+2}, v{a+3}')
        b.ds_write('ds_write_b64', 15, r, 2, 32 * t)
    b.wait_lds(0)
    b.barrier()
    QF = 16
    for u in range(8):
        b.ds_read('ds_read_b128', QF + 4 * u, 4, 5, 64 * u)
    V('v_mov_b32 v6, 0xff800000'); V('v_mov_b32 v7, 0xff800000')
    b.wait_lds(0)

    SR = 48; A1 = 144
    def post(k):
        a = A1 + (k & 1) * 8; d = SR + 4 * k
        ops = []
        for q in range(4):
            ops.append(f'v_cvt_pk_bf16_f32 v{d+q}, v{a+2*q}, v{a+2*q+1}')
            m = 6 + (q & 1)
            ops.append(f'v_max3_f32 v{m}, v{m}, v{a+2*q}, v{a+2*q+1}')
        return ops
    for k in range(16):
        s = 7 + k
        b.barrier()
        if k in (0, 8): stamp()
        V(f'v_add_u32 v14, {pair(s)}, v1')
        a = A1 + (k & 1) * 8
        order = [(T, u) for u in range(8) for T in range(2)]
        regs = []
        def issue(n):
            T, u = order[n]; r = next_fb(); regs.append(r)
            b.ds_read('ds_read_b128', r, 4, 14, T * GRP + 64 * u)
        ahead = 7
        for n in range(ahead): issue(n)
        pend = post(k - 1) if k > 0 else []
        for n in range(16):
            T, u = order[n]
            b.mfma(a + 4 * T, regs[n], QF + 4 * u, None if u == 0 else a + 4 * T)
            if n + ahead < 16: issue(n + ahead)
            if pend and n >= 2: V(pend.pop(0))
        for p in pend: V(p)
    for p in post(15): V(p)
    stamp()
    V('v_max_f32 v6, v6, v7')
    S('s_lshl_b32 s27, s25, 9'); S(f's_add_u32 s27, s27, {MX}')
    V('v_lshlrev_b32 v13, 5, v10'); V('v_add_u32 v13, s27, v13')
    S('s_lshl_b32 s28, s26, 4'); V('v_lshl_add_u32 v14, v11, 2, v13'); V('v_add_u32 v14, s28, v14')
    b.ds_write('ds_write_b32', 14, 6, 1)
    b.wait_lds(0)
    b.barrier()
    b.ds_read('ds_read_b128', 144, 4, 13, 0); b.ds_read('ds_read_b128', 148, 4, 13, 16)
    V('v_max3_f32 v6, v144, v145, v146'); V('v_max3_f32 v7, v147, v148, v149')
    V('v_max3_f32 v6, v6, v150, v151'); V('v_max_f32 v6, v6, v7')
    V('v_cvt_pk_bf16_f32 v6, v6, v6'); V('v_lshlrev_b32 v6, 16, v6')
    V('v_mul_f32 v6, s40, v6'); V('v_sub_f32 v6, 0, v6')
    PF = 144; LA = 152; ON = 156; T0 = 160
    for q in range(4): V(f'v_mov_b32 v{ON+q}, 0x3f803f80')
    def softmax_ops(k):
        ops = []
        d = SR + 4 * k
        for q in range(4):
            ops.append(f'v_lshlrev_b32 v{T0+2*q}, 16, v{d+q}')
            ops.append(f'v_and_b32 v{T0+2*q+1}, 0xffff0000, v{d+q}')
        for q in range(8): ops.append(f'v_fma_f32 v{T0+q}, v{T0+q}, s40, v6')
        for q in range(8): ops.append(f'v_exp_f32 v{T0+q}, v{T0+q}')
        for q in range(4): ops.append(f'v_cvt_pk_bf16_f32 v{T0+q}, v{T0+2*q}, v{T0+2*q+1}')
        return ops
    for p in softmax_ops(0): V(p)
    b.ds_write('ds_write_b128', 9, T0, 4, 0)
    b.wait_lds(0)

    OA = 16
    for k in range(16):
        s = 23 + k
        b.barrier()
        if k in (0, 8): stamp()
        b.ds_read('ds_read_b128', PF, 4, 8, (k & 1) * 10240)
        b.ds_read('ds_read_b128', PF + 4, 4, 8, (k & 1) * 10240 + 1024)
        V(f'v_add_u32 v14, {pair(s)}, v2')
        pend = softmax_ops(k + 1) if k < 15 else []
        items = []
        for ks in range(2):
            for t in range(8):
                def f(r, t=t, ks=ks, k=k):
                    first = (k == 0 and ks == 0)
                    b.mfma(OA + 4 * t, r, PF + 4 * ks, None if first else OA + 4 * t)
                    if t == 7:
                        b.mfma(LA, ON, PF + 4 * ks, None if first else LA)
                items.append((ks * CH + 32 * t, ks * CH + 32 * t + GRP, f))
        def between(n):
            for _ in range(2):
                if pend: V(pend.pop(0))
        run_tr_step(items, ahead=5, between=between)
        for p in pend: V(p)
        if k < 15:
            b.ds_write('ds_write_b128', 9, T0, 4, ((k + 1) & 1) * 10240)
            b.wait_lds(0)
    stamp()
    V(f'v_rcp_f32 v7, v{LA}')
    for r in range(32): V(f'v_mul_f32 v{OA+r}, v{OA+r}, v7')
    for uu in range(4):
        for q in range(4):
            a = OA + 8 * uu + 2 * q
            V(f'v_cvt_pk_bf16_f32 v{FB+4*uu+q}, v{a}, v{a+1}')
    S('s_lshl_b32 s27, s25, 13'); S(f's_add_u32 s27, s27, {XB}')
    V('v_lshlrev_b32 v13, 4, v0'); V('v_add_u32 v13, s27, v13')
    S('s_lshl_b32 s28, s26, 12'); V('v_add_u32 v15, s28, v13')
    b.barrier()
    for uu in range(4):
        b.ds_write('ds_write_b128', 15, FB + 4 * uu, 4, 1024 * uu)
    b.wait_lds(0)
    b.barrier()
    OF = 16
    for u in range(8):
        b.ds_read('ds_read_b128', OF + 4 * u, 4, 13, 1024 * u)
    b.wait_lds(0)
    OC = 48
    for u in range(8):
        s = 39 + u
        b.barrier()
        if u in (0, 4): stamp()
        V(f'v_add_u32 v14, {pair(s)}, v4')
        items = []
        for t in range(14):
            def f(r, t=t, u=u):
                b.mfma(OC + 4 * t, r, OF + 4 * u, None if u == 0 else OC + 4 * t)
            items.append((32 * t, 32 * t + 16 * WOP, f))
        run_tr_step(items)
    stamp()
    V('v_lshlrev_b32 v13, 4, v0')
    if o.part == 'bf16':
        S('s_mul_i32 s27, s24, 7168')
        for tp in range(7):
            for q in range(4):
                a = OC + 8 * tp + 2 * q
                V(f'v_cvt_pk_bf16_f32 v{FB+4*tp+q}, v{a}, v{a+1}')
            if tp == 4: S('s_add_u32 s27, s27, 4096')
            b.buf_store(FB + 4 * tp, 4, 13, 36, 's27', (tp % 4) * 1024, o.stflags)
    else:
        S('s_mul_i32 s27, s24, 14336')
        for t in range(14):
            if t and t % 4 == 0: S('s_add_u32 s27, s27, 4096')
            b.buf_store(OC + 4 * t, 4, 13, 36, 's27', (t % 4) * 1024, o.stflags)
    if o.stamps:
        b.wait_vm(0)
        stamp()
        S(f's_cmp_lg_u32 s24, {99 if o.lstamps else 0}'); S('s_cbranch_scc1 L_main_end')
        S('s_mov_b32 s36, s22'); S('s_mov_b32 s37, s23'); S('s_mov_b32 s38, 16384')
        for k in range(16):
            V(f'v_mov_b32 v{16+k}, s{60+2*min(k, nst[0]-1)}')
        S('s_lshl_b32 s27, s2, 6'); V('v_mov_b32 v13, s27')
        V('v_cmp_eq_u32 vcc, 0, v0'); S('s_and_saveexec_b64 s[50:51], vcc')
        for k in range(4):
            b.buf_store(16 + 4 * k, 4, 13, 36, '0', 16 * k)
    S('s_endpgm')

    b.label('L_loader'); b.reset()
    nl = [1]
    def lstamp():
        if o.lstamps:
            k = nl[0]; nl[0] += 1
            assert k < 16
            b._emit(f's_memrealtime s[{60+2*k}:{61+2*k}]')
            b._emit('s_waitcnt lgkmcnt(0)')
    lstamp()
    S('s_sub_u32 s25, s24, 10')
    V('v_and_b32 v1, 31, v0'); V('v_lshlrev_b32 v1, 4, v1'); V('v_lshrrev_b32 v2, 5, v0')
    V('v_lshl_add_u32 v3, v2, 15, v1')
    V('v_lshl_add_u32 v1, v2, 12, v1')
    V('v_lshlrev_b32 v4, 4, v0')
    b.wait_smem()
    lstamp()
    S('s_lshl_b32 s27, s8, 9')
    S('s_add_u32 s32, s18, s27'); S('s_addc_u32 s33, s19, 0'); S('s_sub_u32 s34, 3670016, s27'); S('s_mov_b32 s35, 0x00020000')
    S('s_lshl_b32 s27, s6, 3'); S('s_add_u32 s27, s27, s3'); S('s_lshl_b32 s27, s27, 19')
    S('s_add_u32 s36, s14, s27'); S('s_addc_u32 s37, s15, 0'); S('s_mov_b32 s38, 524288'); S('s_mov_b32 s39, 0x00020000')
    S('s_add_u32 s40, s16, s27'); S('s_addc_u32 s41, s17, 0'); S('s_mov_b32 s42, 524288'); S('s_mov_b32 s43, 0x00020000')
    S('s_mul_i32 s27, s8, 229376')
    S('s_add_u32 s44, s20, s27'); S('s_addc_u32 s45, s21, 0'); S('s_mov_b32 s46, 229376'); S('s_mov_b32 s47, 0x00020000')
    S(f's_mul_i32 s26, s25, {CH}')
    S('s_lshl_b32 s28, s25, 14')
    S('s_lshl_b32 s48, s25, 18')
    S(f's_mul_i32 s49, s25, {16*WOP}')
    S(f's_mul_i32 s50, s25, {16*896}')
    S('s_mov_b32 s30, s29')
    def issue_step(s):
        if s < 7:
            S('s_lshl_b32 s31, s30, 19'); S('s_add_u32 s31, s31, s48')
            for grp in range(2):
                for nn in range(8):
                    row = 16 * grp + ((nn & 3) | ((nn >> 2) << 3))
                    S(f's_add_u32 m0, s26, {pair(s) + grp * GRP + nn * BLK}')
                    if row: S(f's_add_u32 s52, s31, {row * 8192}')
                    b.dma(3, 32, 's52' if row else 's31', 0, o.wflags)
            S('s_add_u32 s30, s30, 1'); S('s_cmp_eq_u32 s30, 7'); S('s_cselect_b32 s30, 0, s30')
        elif s < 39:
            srd = 36 if s < 23 else 40
            rel = s - 7 if s < 23 else s - 23
            for grp in range(2):
                S(f's_add_u32 s31, s28, {rel * 32768 + grp * 8192}')
                for nn in range(8):
                    S(f's_add_u32 m0, s26, {pair(s) + grp * GRP + nn * BLK - nn * 512}')
                    b.dma(1, srd, 's31', nn * 512, o.kvflags)
        else:
            u = s - 39
            if u == 0: S('s_mov_b32 exec_hi, 0x00ffffff')
            for n in range(16):
                if n % 4 == 0: S(f's_add_u32 s31, s50, {32 * u * 896 + (n >> 2) * 3584}')
                S(f's_add_u32 m0, s49, {pair(s) + n * WOP - (n & 3) * 896}')
                b.dma(4, 44, 's31', (n & 3) * 896, o.wflags)
    for s in range(3):
        issue_step(s)
        lstamp()
    for s in range(NSTEP):
        later = min(NSTEP - 1, s + 2) - s
        b.wait_vm(16 * later)
        if s in (0, 1, 2, 3, 4, 7, 8, 23): lstamp()
        b.barrier()
        if s in (0, 7): lstamp()
        if s + 3 < NSTEP: issue_step(s + 3)
        if s in (6, 38): b.barrier(); b.barrier()
        if s == 22: b.barrier()
    if o.lstamps:
        S('s_cmp_lg_u32 s24, 10'); S('s_cbranch_scc1 L_main_end')
        S('s_mov_b32 s36, s22'); S('s_mov_b32 s37, s23'); S('s_mov_b32 s38, 16384')
        for k in range(16):
            V(f'v_mov_b32 v{16+k}, s{60+2*min(k, nl[0]-1)}')
        S('s_lshl_b32 s27, s2, 6'); V('v_mov_b32 v13, s27')
        V('v_cmp_eq_u32 vcc, 0, v0'); S('s_and_saveexec_b64 s[50:51], vcc')
        for k in range(4):
            b.buf_store(16 + 4 * k, 4, 13, 36, '0', 16 * k)
    b.label('L_main_end')
    S('s_endpgm')
    main_v = max(b.maxv + 1, 168)
    assert b.maxv < 168, b.maxv
    main_txt = b.text()

    r = B(); S = r.salu; V = r.valu
    red = 'red_kernel'
    r.lines.append(f'.globl {red}\n.p2align 8\n.type {red},@function\n{red}:')
    if o.part == 'bf16':
        nwg = 280
        S(f's_cmp_ge_u32 s2, {nwg}'); S('s_cbranch_scc1 L_red_end')
        r.smem('s_load_dwordx2 s[4:5], s[0:1], 96'); r.smem('s_load_dwordx2 s[6:7], s[0:1], 80')
        V('v_lshrrev_b32 v1, 6, v0'); V('v_and_b32 v0, 63, v0'); V('v_readfirstlane_b32 s8, v1')
        S('s_lshl_b32 s9, s2, 2'); r.nop(2); S('s_add_u32 s9, s9, s8')
        S('s_mul_i32 s10, s9, 937'); S('s_lshr_b32 s10, s10, 16')
        S('s_mul_i32 s11, s10, 70'); S('s_sub_u32 s11, s9, s11')
        S('s_mul_i32 s12, s11, 37'); S('s_lshr_b32 s12, s12, 8')
        S('s_mul_i32 s13, s12, 7'); S('s_sub_u32 s13, s11, s13')
        S(f's_mul_i32 s14, s10, {16 * PART}')
        S('s_lshl_b32 s15, s11, 10'); S('s_add_u32 s14, s14, s15')
        V('v_lshlrev_b32 v2, 4, v0')
        r.wait_smem()
        S('s_add_u32 s16, s4, s14'); S('s_addc_u32 s17, s5, 0')
        if o.stamps: S('s_add_u32 s16, s16, 16384'); S('s_addc_u32 s17, s17, 0')
        S(f's_mov_b32 s18, {16 * PART}'); S('s_mov_b32 s19, 0x00020000')
        for w in range(16):
            S(f's_mov_b32 s20, {w * PART}')
            r.buf_load(8 + 4 * w, 4, 2, 16, 's20', 0, o.rdflags)
        S('s_and_b32 s21, s10, 7'); S('s_lshr_b32 s22, s10, 3')
        S('s_lshr_b32 s23, s12, 1'); S('s_and_b32 s24, s12, 1')
        S('s_mul_i32 s21, s21, 80'); S('s_lshl_b32 s23, s23, 4'); S('s_add_u32 s21, s21, s23'); S('s_mul_i32 s21, s21, 1792')
        S('s_mul_i32 s22, s22, 896'); S('s_mul_i32 s24, s24, 448'); S('s_lshl_b32 s25, s13, 6')
        S('s_add_u32 s21, s21, s22'); S('s_add_u32 s21, s21, s24'); S('s_add_u32 s21, s21, s25')
        V('v_and_b32 v3, 15, v0'); V('v_mul_u32_u24 v3, 1792, v3'); V('v_lshrrev_b32 v4, 4, v0'); V('v_lshl_add_u32 v3, v4, 3, v3')
        S('s_mov_b32 s28, s6'); S('s_mov_b32 s29, s7'); S('s_mov_b32 s30, 1146880'); S('s_mov_b32 s31, 0x00020000')
        AC = 72
        for w in range(16):
            for q in range(4):
                src = 8 + 4 * w + q
                if w == 0:
                    V(f'v_lshlrev_b32 v{AC+2*q}, 16, v{src}'); V(f'v_and_b32 v{AC+2*q+1}, 0xffff0000, v{src}')
                else:
                    V(f'v_lshlrev_b32 v5, 16, v{src}'); V(f'v_and_b32 v6, 0xffff0000, v{src}')
                    V(f'v_add_f32 v{AC+2*q}, v{AC+2*q}, v5'); V(f'v_add_f32 v{AC+2*q+1}, v{AC+2*q+1}, v6')
        for q in range(4): V(f'v_cvt_pk_bf16_f32 v{8+q}, v{AC+2*q}, v{AC+2*q+1}')
        r.buf_store(8, 2, 3, 28, 's21', 0); r.buf_store(10, 2, 3, 28, 's21', 32)
    else:
        nwg = 560
        S(f's_cmp_ge_u32 s2, {nwg}'); S('s_cbranch_scc1 L_red_end')
        r.smem('s_load_dwordx2 s[4:5], s[0:1], 96'); r.smem('s_load_dwordx2 s[6:7], s[0:1], 80')
        V('v_lshrrev_b32 v1, 6, v0'); V('v_and_b32 v0, 63, v0'); V('v_readfirstlane_b32 s8, v1')
        S('s_lshl_b32 s9, s2, 2'); r.nop(2); S('s_add_u32 s9, s9, s8')
        S('s_mul_i32 s10, s9, 7490'); S('s_lshr_b32 s10, s10, 20')
        S('s_mul_i32 s11, s10, 140'); S('s_sub_u32 s11, s9, s11')
        S('s_mul_i32 s12, s11, 147'); S('s_lshr_b32 s12, s12, 11')
        S('s_mul_i32 s13, s12, 14'); S('s_sub_u32 s13, s11, s13')
        S(f's_mul_i32 s14, s10, {16 * PART}')
        S('s_lshl_b32 s15, s11, 10'); S('s_add_u32 s14, s14, s15')
        V('v_lshlrev_b32 v2, 4, v0')
        r.wait_smem()
        S('s_add_u32 s16, s4, s14'); S('s_addc_u32 s17, s5, 0')
        if o.stamps: S('s_add_u32 s16, s16, 16384'); S('s_addc_u32 s17, s17, 0')
        S(f's_mov_b32 s18, {16 * PART}'); S('s_mov_b32 s19, 0x00020000')
        for w in range(16):
            S(f's_mov_b32 s20, {w * PART}')
            r.buf_load(8 + 4 * w, 4, 2, 16, 's20', 0, o.rdflags)
        S('s_and_b32 s21, s10, 7'); S('s_lshr_b32 s22, s10, 3')
        S('s_lshr_b32 s23, s12, 1'); S('s_and_b32 s24, s12, 1')
        S('s_mul_i32 s21, s21, 80'); S('s_lshl_b32 s23, s23, 4'); S('s_add_u32 s21, s21, s23'); S('s_mul_i32 s21, s21, 1792')
        S('s_mul_i32 s22, s22, 896'); S('s_mul_i32 s24, s24, 448'); S('s_lshl_b32 s25, s13, 5')
        S('s_add_u32 s21, s21, s22'); S('s_add_u32 s21, s21, s24'); S('s_add_u32 s21, s21, s25')
        V('v_and_b32 v3, 15, v0'); V('v_mul_u32_u24 v3, 1792, v3'); V('v_lshrrev_b32 v4, 4, v0'); V('v_lshl_add_u32 v3, v4, 3, v3')
        S('s_mov_b32 s28, s6'); S('s_mov_b32 s29, s7'); S('s_mov_b32 s30, 1146880'); S('s_mov_b32 s31, 0x00020000')
        for w in range(1, 16):
            for q in range(4):
                V(f'v_add_f32 v{8+q}, v{8+q}, v{8+4*w+q}')
        V('v_cvt_pk_bf16_f32 v8, v8, v9'); V('v_cvt_pk_bf16_f32 v9, v10, v11')
        r.buf_store(8, 2, 3, 28, 's21', 0)
    r.label('L_red_end')
    S('s_endpgm')
    red_txt = r.text()

    out = HEADER
    out += f'; @launch kernel={main} grid=(256,1,1) block=(768,1,1) lds={LDS_TOTAL}\n'
    out += f'; @launch kernel={red} grid=({nwg},1,1) block=(256,1,1) lds=0\n'
    out += '.amdgcn_target "amdgcn-amd-amdhsa--gfx950"\n.text\n'
    out += main_txt + red_txt
    out += kd(main, 168) + kd(red, 80, 40)
    return out

if __name__ == '__main__':
    ap = argparse.ArgumentParser()
    ap.add_argument('-o', default='v1.s')
    ap.add_argument('--part', default='bf16')
    ap.add_argument('--kvflags', default='nt')
    ap.add_argument('--wflags', default='')
    ap.add_argument('--stflags', default='')
    ap.add_argument('--rdflags', default='')
    ap.add_argument('--stamps', action='store_true')
    ap.add_argument('--lstamps', action='store_true')
    ap.add_argument('--rot', type=int, default=1)
    o = ap.parse_args()
    open(o.o, 'w').write(gen(o))
```

```python
import sys, argparse, struct
from asmb import B, vr, sr

NAME = 'concat_heads__gqa_block_cached__gqa_block_cached__near_ridge'
HEADER = open('cdna_kernels/' + NAME + '.s.ref').read().split('; Override launch')[0]

CH = 16896; GRP = 8448; BLK = 1056; WOP = 928
LDS_TOTAL = 163840
CX = LDS_TOTAL - 20480 - 3072
SM = CX + 20480
SM_N = SM + 2560
CAP = CX
WS_GF = 65536
WS_PART = 32 << 20
WS_SIZE = 64 << 20
PART = 71680
SPIN = 0x100000
C_EXP = 0.0625 * 1.4426950408889634
def f32hex(x): return '0x%08x' % struct.unpack('<I', struct.pack('<f', x))[0]

class Piece:
    def __init__(s, kind, idx, size, use, rel=None, ninstr=0):
        s.kind, s.idx, s.size, s.use, s.ninstr = kind, idx, size, use, ninstr
        s.rel = use + 1 if rel is None else rel
        s.addr = None; s.issue = None

ST_QW = 7; ST_QR = 8; ST_K = 9; ST_V = 25; ST_T0 = 41; ST_T1 = 42; ST_W = 42; NBAR = 50
def plan(o):
    P = []
    for s in range(7):
        if s < 6:
            P.append(Piece('X', s, 10240, s, ninstr=10))
            P.append(Piece('WQ', (s, 0), CH, s, ninstr=16)); P.append(Piece('WQ', (s, 1), CH, s, ninstr=16))
        else:
            P.append(Piece('Q6', s, 10240 + 2 * CH, s, rel=ST_K, ninstr=42))
    for k in range(16):
        for c in range(2): P.append(Piece('K', (k, c), CH, ST_K + k, ninstr=16))
    for v in range(16):
        for c in range(2): P.append(Piece('V', (v, c), CH, ST_V + v, ninstr=16))
    nw_before = o.wbefore
    W = [Piece('W', (u, c), 16 * WOP, ST_W + u, ninstr=16) for u in range(8) for c in range(2)]
    P += W[:nw_before]
    P.append(Piece('OS', 0, 40960, ST_T0, rel=NBAR, ninstr=0))
    P += W[nw_before:]
    ptr = 0; prev_issue = -1
    for n, p in enumerate(P):
        while True:
            if ptr + p.size > CAP: ptr = 0
            iss = prev_issue if p.ninstr else -1; blocker = None
            for q in P[:n]:
                if q.addr < ptr + p.size and ptr < q.addr + q.size and q.rel > iss:
                    iss = q.rel; blocker = q
            if iss <= p.use - (1 if p.ninstr else 0): break
            ptr = blocker.addr + blocker.size
        p.addr = ptr; ptr += p.size
        p.issue = iss
        if p.ninstr: prev_issue = iss
    return P

def kd(name, vgpr, sgpr=100):
    return f'''.section .rodata,"a"
.p2align 6
.amdhsa_kernel {name}
  .amdhsa_next_free_vgpr {vgpr}
  .amdhsa_next_free_sgpr {sgpr}
  .amdhsa_accum_offset {(vgpr + 3) // 4 * 4}
  .amdhsa_group_segment_fixed_size 0
  .amdhsa_kernarg_size 104
  .amdhsa_user_sgpr_count 2
  .amdhsa_user_sgpr_kernarg_segment_ptr 1
  .amdhsa_system_sgpr_workgroup_id_x 1
.end_amdhsa_kernel
'''

def gen(o):
    P = plan(o)
    A = {(p.kind, p.idx): p.addr for p in P}
    q6 = A[('Q6', 6)]
    A[('X', 6)] = q6; A[('WQ', (6, 0))] = q6 + 10240; A[('WQ', (6, 1))] = q6 + 10240 + CH
    QS = q6; OS = A[('OS', 0)]
    if o.verbose:
        for p in P: print(p.kind, p.idx, p.addr, 'issue', p.issue, 'use', p.use, file=sys.stderr)

    b = B(); S = b.salu; V = b.valu; E = b._emit
    main = NAME + '_kernel'
    b.lines.append(f'.globl {main}\n.p2align 8\n.type {main},@function\n{main}:')
    S('s_cmp_ge_u32 s2, 256'); S('s_cbranch_scc1 L_end')
    nst = [0]; stnames = []
    want = set(o.stamplist.split(','))
    def stamp(name):
        if o.stamps and (name in want or name in ('start', 'end')):
            k = nst[0]; nst[0] += 1; stnames.append(name)
            assert k < 16, stnames
            E(f's_memrealtime s[{64+2*k}:{65+2*k}]')
            E('s_waitcnt lgkmcnt(0)'); b.lds_q = []
    stamp('start')
    lab = [0]
    def newlab(p='L'):
        lab[0] += 1; return f'{p}_{lab[0]}'
    S('s_and_b32 s3, s2, 7'); S('s_lshr_b32 s4, s2, 3'); S('s_and_b32 s5, s4, 1')
    S('s_lshr_b32 s6, s4, 1'); S('s_and_b32 s6, s6, 7'); S('s_lshr_b32 s7, s4, 4')
    S('s_mul_i32 s9, s7, 40')
    S('s_add_u32 s10, s0, s9'); S('s_addc_u32 s11, s1, 0')
    b.smem('s_load_dwordx8 s[12:19], s[10:11], 0')
    b.smem('s_load_dwordx2 s[20:21], s[10:11], 32')
    b.smem('s_load_dwordx4 s[56:59], s[0:1], 80')
    b.smem('s_load_dwordx2 s[22:23], s[0:1], 96')
    V('v_lshrrev_b32 v1, 6, v0')
    V('v_and_b32 v0, 63, v0')
    V('v_readfirstlane_b32 s24, v1')
    S('s_lshl_b32 s8, s3, 1'); S('s_add_u32 s8, s8, s5')
    S('s_cmp_eq_u32 s6, 7'); S('s_cselect_b32 s29, 0, s6')
    S('s_cmp_ge_u32 s24, 10'); S('s_cbranch_scc1 L_loader')

    S('s_cmp_ge_u32 s24, 5'); S('s_cselect_b32 s26, 1, 0')
    S('s_mul_i32 s27, s26, 5'); S('s_sub_u32 s25, s24, s27')
    V('v_and_b32 v10, 15, v0'); V('v_lshrrev_b32 v11, 4, v0'); V('v_lshlrev_b32 v5, 4, v0')
    V('v_and_b32 v8, 7, v10'); V(f'v_mul_u32_u24 v8, {BLK}, v8')
    V('v_lshrrev_b32 v9, 3, v10'); V('v_lshl_add_u32 v8, v9, 9, v8')
    V('v_lshl_add_u32 v1, v11, 4, v8')
    V('v_lshrrev_b32 v8, 2, v10'); V('v_and_b32 v9, 1, v11'); V('v_lshl_add_u32 v8, v9, 2, v8')
    V(f'v_mul_u32_u24 v8, {BLK}, v8')
    V('v_and_b32 v9, 3, v10'); V('v_lshl_add_u32 v8, v9, 3, v8')
    V('v_lshrrev_b32 v9, 1, v11')
    V('v_lshl_add_u32 v2, v9, 7, v8'); S('s_lshl_b32 s27, s26, 9'); V('v_add_u32 v2, s27, v2')
    V(f'v_mul_u32_u24 v9, {GRP}, v9'); V('v_add_u32 v3, v9, v8'); S('s_lshl_b32 s27, s24, 6'); V('v_add_u32 v3, s27, v3')
    V('v_lshrrev_b32 v8, 2, v10'); V('v_lshl_add_u32 v8, v11, 2, v8'); V(f'v_mul_u32_u24 v8, {WOP}, v8')
    V('v_and_b32 v9, 3, v10'); V('v_lshl_add_u32 v8, v9, 3, v8')
    S('s_sub_u32 s31, s24, 3'); S('s_lshl_b32 s27, s31, 7'); V('v_add_u32 v4, s27, v8')
    V('v_lshlrev_b32 v6, 7, v10')
    V('v_lshrrev_b32 v7, 1, v10'); V('v_xor_b32 v7, v7, v11'); V('v_lshl_add_u32 v6, v7, 4, v6')
    V('v_xor_b32 v7, 64, v6')
    S(f's_mov_b32 s40, {f32hex(C_EXP)}')
    b.wait_smem()
    S('s_mov_b32 s36, s22'); S('s_mov_b32 s37, s23'); S(f's_mov_b32 s38, {WS_SIZE}'); S('s_mov_b32 s39, 0x00020000')
    S('s_mov_b32 s32, s58'); S('s_mov_b32 s33, s59'); S('s_mov_b32 s34, 256'); S('s_mov_b32 s35, 0x00020000')

    QF = 16; PR = 48; ER = 112; FB = 144; NFB = 6
    fbi = [0]
    def next_fb():
        r = FB + 4 * (fbi[0] % NFB); fbi[0] += 1; return r
    def clean():
        b.wait_lds(0); b.nop(8)
        q = b.vm_q; b.reset(); b.vm_q = q
    def poll(voff, soff, tmp):
        l = newlab('L_poll'); d = newlab('L_pdone')
        S('s_mov_b32 s46, 0')
        b.label(l)
        E(f'buffer_load_dwordx2 v[{tmp}:{tmp+1}], v{voff}, s[36:39], {soff} offen sc1')
        E('s_waitcnt vmcnt(0)')
        E(f'v_cmp_eq_u32 vcc, s42, v{tmp}')
        E(f'v_cmp_eq_u32 s[48:49], s43, v{tmp+1}')
        E('s_and_b64 vcc, vcc, s[48:49]')
        E('s_cmp_eq_u64 vcc, exec')
        E(f's_cbranch_scc1 {d}')
        E('s_sleep 1')
        E('s_add_u32 s46, s46, 1'); E(f's_cmp_lt_u32 s46, {SPIN}'); E(f's_cbranch_scc1 {l}')
        b.label(d)
        b.vm_q = []
    def cond(cmp):
        class C:
            def __enter__(s):
                clean(); s.l = newlab('L_c')
                S(cmp); S(f's_cbranch_scc0 {s.l}')
            def __exit__(s, *a):
                b.wait_lds(0); b.nop(8)
                b.label(s.l); b.reset()
        return C()
    def dump_stamps(n):
        S('s_mov_b64 exec, -1')
        for k in range(16):
            V(f'v_mov_b32 v{48+k}, s{64+2*min(k, n-1)}')
        S('s_lshl_b32 s27, s2, 6'); V('v_mov_b32 v9, s27')
        V('v_cmp_eq_u32 vcc, 0, v0'); S('s_and_saveexec_b64 s[50:51], vcc')
        for k in range(4):
            b.buf_store(48 + 4 * k, 4, 9, 36, '0', 16 * k)

    ACC = PR; XB_ = 16; WF = 112
    lqs = newlab('L_qskip'); lqj = newlab('L_qjoin')
    S('s_cmp_ge_u32 s24, 8'); S(f's_cbranch_scc1 {lqs}')
    for s in range(7):
        b.barrier()
        stamp(f'q{s}')
        for ks in range(2):
            V(f'v_add_u32 v9, {A[("WQ", (s, ks))]}, v3'); V(f'v_add_u32 v8, {A[("X", s)]}, v{6 + ks}')
            xb = XB_ if ks == 0 else 128; wf = WF + 8 * ks
            b.ds_read('ds_read_b128', xb, 4, 8, 0)
            for dt in range(2):
                b.ds_read('ds_read_b64_tr_b16', wf + 4 * dt, 2, 9, 32 * dt)
                b.ds_read('ds_read_b64_tr_b16', wf + 4 * dt + 2, 2, 9, 32 * dt + 512)
            for qt in range(1, 5): b.ds_read('ds_read_b128', xb + 4 * qt, 4, 8, 2048 * qt)
            if ks == 0: continue
            for k2 in range(2):
                xb = XB_ if k2 == 0 else 128; wf = WF + 8 * k2
                for qt in range(5):
                    for dt in range(2):
                        a = ACC + 8 * qt + 4 * dt
                        b.mfma(a, wf + 4 * dt, xb + 4 * qt, None if (s == 0 and k2 == 0) else a)
    stamp('qdone')
    V('v_lshlrev_b32 v8, 4, v10'); V('v_lshrrev_b32 v9, 1, v11'); V('v_lshl_add_u32 v8, v9, 8, v8')
    V('v_and_b32 v9, 1, v11'); V('v_lshl_add_u32 v8, v9, 3, v8'); S('s_lshl_b32 s27, s24, 10'); S(f's_add_u32 s27, s27, {QS}'); V('v_add_u32 v8, s27, v8')
    for n in range(10):
        a = ACC + 4 * n
        V(f'v_cvt_pk_bf16_f32 v{a}, v{a}, v{a+1}'); V(f'v_cvt_pk_bf16_f32 v{a+1}, v{a+2}, v{a+3}')
    b.barrier()
    for qt in range(5):
        for dt in range(2):
            b.ds_write('ds_write_b64', 8, ACC + 8 * qt + 4 * dt, 2, qt * 8192 + dt * 512)
    b.wait_lds(0)
    S(f's_branch {lqj}')
    b.label(lqs); b.reset()
    l1 = newlab(); l2 = newlab(); l3 = newlab(); l4 = newlab()
    S('s_cmp_lg_u32 s24, 8'); S(f's_cbranch_scc1 {l1}')
    V('v_mov_b32 v8, 0')
    S('s_cmp_lg_u32 s2, 0'); S(f's_cbranch_scc1 {l4}')
    E('s_memrealtime s[44:45]'); E('s_waitcnt lgkmcnt(0)')
    S('s_or_b32 s44, s44, 1')
    V('v_mov_b32 v16, s44'); V('v_mov_b32 v17, s45')
    E('buffer_store_dwordx2 v[16:17], v8, s[32:35], 0 offen sc1')
    b.label(l4)
    b.label(l1)
    for s in range(5): b.barrier()
    S('s_cmp_lg_u32 s24, 8'); S(f's_cbranch_scc1 {l3}_x')
    S('s_mov_b32 s46, 0')
    b.label(l2)
    E('buffer_load_dwordx2 v[18:19], v8, s[32:35], 0 offen sc1')
    E('s_waitcnt vmcnt(0)')
    E('v_cmp_ne_u32 vcc, 0, v18')
    E(f's_cbranch_vccnz {l3}')
    E('s_sleep 4')
    E('s_add_u32 s46, s46, 1'); E(f's_cmp_lt_u32 s46, {SPIN}'); E(f's_cbranch_scc1 {l2}')
    b.label(l3)
    V(f'v_mov_b32 v8, {SM_N}')
    b.ds_write('ds_write_b64', 8, 18, 2)
    b.wait_lds(0)
    b.label(f'{l3}_x')
    for s in range(3): b.barrier()
    b.label(lqj); clean()
    b.barrier()
    S('s_lshl_b32 s28, s25, 13'); S(f's_add_u32 s27, s28, {QS}')
    V('v_add_u32 v9, s27, v5')
    for u in range(8):
        b.ds_read('ds_read_b128', QF + 4 * u, 4, 9, 1024 * u)
    V(f'v_mov_b32 v8, {SM_N}'); b.ds_read('ds_read_b64', 12, 2, 8)
    V('v_mov_b32 v7, 0xff800000')
    V('v_readfirstlane_b32 s42, v12'); V('v_readfirstlane_b32 s43, v13')
    b.wait_lds(0)
    stamp('qx')

    def acc_base(g): return PR + 32 if g % 2 == 0 else ER
    def max_ops(h):
        g = h >> 2; a = acc_base(g) + 8 * (h & 3)
        return [f'v_max3_f32 v7, v7, v{a+2*q}, v{a+2*q+1}' for q in range(4)]
    FREG = {1: 12, 2: 13, 3: 3}
    def fin_ops(g):
        ops = ['v_mov_b32 v8, v7', 'v_permlane32_swap_b32 v7, v8', 'v_max_f32 v7, v7, v8',
               'v_mov_b32 v8, v7', 'v_permlane16_swap_b32 v7, v8', 'v_max_f32 v7, v7, v8',
               'v_mul_f32 v8, s40, v7']
        if g == 0: ops += ['v_sub_f32 v6, 0, v8']
        else: ops += [f'v_add_f32 v{FREG[g]}, v6, v8', 'v_sub_f32 v6, 0, v8', f'v_exp_f32 v{FREG[g]}, -v{FREG[g]}']
        return ops
    def exp_ops(g):
        a = acc_base(g); d = PR + 16 * g
        ops = []
        for kq in range(4):
            for q in range(8): ops.append(f'v_fma_f32 v{a+8*kq+q}, v{a+8*kq+q}, s40, v6')
            for q in range(8): ops.append(f'v_exp_f32 v{a+8*kq+q}, v{a+8*kq+q}')
            for q in range(4): ops.append(f'v_cvt_pk_bf16_f32 v{d+4*kq+q}, v{a+8*kq+2*q}, v{a+8*kq+2*q+1}')
        return ops
    pend = []
    def pop(n):
        for _ in range(n):
            if pend: V(pend.pop(0))
    for k in range(16):
        b.barrier()
        stamp(f'k{k}')
        a0, a1 = A[('K', (k, 0))], A[('K', (k, 1))]
        S(f's_mul_i32 s27, s26, {a1 - a0}'); S(f's_add_u32 s27, s27, {a0}'); V('v_add_u32 v9, s27, v1')
        order = [(T, u) for u in range(8) for T in range(2)]
        regs = []
        def issue(n):
            T, u = order[n]; r = next_fb(); regs.append(r)
            b.ds_read('ds_read_b128', r, 4, 9, T * GRP + 64 * u)
        ahead = 5
        for n in range(ahead): issue(n)
        g = k >> 2; a = acc_base(g) + 8 * (k & 3)
        if k > 0:
            new = max_ops(k - 1)
            if k % 4 == 0:
                assert not pend, len(pend)
                pend.extend(new + fin_ops(g - 1) + exp_ops(g - 1))
            else: pend[:0] = new
        for n in range(16):
            T, u = order[n]
            b.mfma(a + 4 * T, regs[n], QF + 4 * u, None if u == 0 else a + 4 * T)
            if n + ahead < 16: issue(n + ahead)
            pop(2 if (k % 4 or n >= 8) else 2)
    assert not pend
    stamp('kdone')
    pend.extend(max_ops(15) + fin_ops(3) + exp_ops(3))
    KEEP = [16, 24, 128, 136]; LA = 24; ON = 28; OA = 32
    for q in range(4): V(f'v_mov_b32 v{ON+q}, 0x3f803f80')
    pop(o.npre)
    S('s_lshl_b32 s27, s25, 12'); S(f's_add_u32 s27, s27, {CX}'); V('v_add_u32 v14, s27, v5')
    S('s_lshl_b32 s27, s25, 9'); S(f's_add_u32 s27, s27, {SM}'); V('v_lshlrev_b32 v15, 3, v0'); V('v_add_u32 v15, s27, v15')
    def combine(sl):
        RX = FB
        if sl == 0:
            b.ds_read('ds_read_b64', 8, 2, 15)
        for q in range(4): b.ds_read('ds_read_b128', RX + 4 * q, 4, 14, 1024 * q)
        if sl == 0:
            V('v_min_f32 v160, v6, v8')
            V('v_sub_f32 v10, v160, v6'); V('v_sub_f32 v11, v160, v8')
            V('v_exp_f32 v10, v10'); V('v_exp_f32 v11, v11')
            V('v_mul_f32 v160, v10, v7'); V('v_fma_f32 v160, v11, v9, v160')
            V('v_rcp_f32 v160, v160')
            V('v_mul_f32 v10, v10, v160'); V('v_mul_f32 v11, v11, v160')
        for q in range(16):
            V(f'v_mul_f32 v{OA+q}, v{OA+q}, v10'); V(f'v_fma_f32 v{OA+q}, v{RX+q}, v11, v{OA+q}')
        for q in range(8): V(f'v_cvt_pk_bf16_f32 v{KEEP[sl]+q}, v{OA+2*q}, v{OA+2*q+1}')

    for v in range(16):
        sl = v >> 2; hv = v & 3
        b.barrier()
        stamp(f'v{v}')
        if hv == 0 and sl > 0:
            with cond('s_cmp_eq_u32 s26, 0'): combine(sl - 1)
        V(f'v_add_u32 v9, {A[("V", (v, 0))]}, v2'); V(f'v_add_u32 v8, {A[("V", (v, 1))]}, v2') if not pend else None
        if pend:
            V(f'v_add_u32 v8, {A[("V", (v, 1))]}, v2')
        items = []
        for m in range(4):
            kg = 4 * hv + m
            for t in range(4):
                off = (m & 1) * GRP + 32 * t
                items.append((9 if m < 2 else 8, off, kg, t))
        regs = []
        def issue(n):
            r = next_fb(); regs.append(r)
            b.ds_read('ds_read_b64_tr_b16', r, 2, items[n][0], items[n][1])
            b.ds_read('ds_read_b64_tr_b16', r + 2, 2, items[n][0], items[n][1] + 256)
        ahead = 4
        for n in range(ahead): issue(n)
        if v == 3: pop(len(pend))
        if hv > 0:
            for q in range(16): V(f'v_mul_f32 v{OA+q}, v{OA+q}, v{FREG[hv]}')
            if sl == 0: V(f'v_mul_f32 v{LA}, v{LA}, v{FREG[hv]}')
        for n in range(16):
            _, _, kg, t = items[n]
            if n + ahead < 16: issue(n + ahead)
            b.mfma(OA + 4 * t, regs[n], PR + 4 * kg, None if kg == 0 else OA + 4 * t)
            if sl == 0 and t == 3: b.mfma(LA, ON, PR + 4 * kg, None if kg == 0 else LA)
            pop(2)
        if hv == 3:
            if sl == 0: V(f'v_mov_b32 v7, v{LA}')
            with cond('s_cmp_eq_u32 s26, 1'):
                for q in range(4): b.ds_write('ds_write_b128', 14, OA + 4 * q, 4, 1024 * q)
                if sl == 0: b.ds_write('ds_write_b64', 15, 6, 2)
    stamp('vdone')
    b.barrier()
    with cond('s_cmp_eq_u32 s26, 0'):
        combine(3)
        S('s_lshl_b32 s27, s25, 13'); S(f's_add_u32 s27, s27, {OS}'); V('v_add_u32 v9, s27, v5')
        for u in range(8):
            b.ds_write('ds_write_b128', 9, KEEP[u >> 1] + 4 * (u & 1), 4, 1024 * u)
    stamp('comb')
    V(f'v_add_u32 v3, {OS}, v5')
    OC = 48; OFB = [16, 128]; WFB = [148, 32]
    lnw = newlab('L_nw'); lwj = newlab('L_wj')
    S('s_cmp_lt_u32 s24, 3'); S(f's_cbranch_scc1 {lnw}')
    for u in range(8):
        b.barrier()
        stamp(f'w{u}')
        V(f'v_add_u32 v9, {A[("W", (u, 0))]}, v4'); V(f'v_add_u32 v8, {A[("W", (u, 1))]}, v4')
        ofb = [16, 20, 24, 28, 164] if u & 1 == 0 else [128, 132, 136, 140, 144]
        wfb = WFB[u & 1]
        b.ds_read('ds_read_b128', ofb[0], 4, 3, 1024 * u)
        for nt in range(4):
            b.ds_read('ds_read_b64_tr_b16', wfb + 4 * nt, 2, 9, 32 * nt)
            b.ds_read('ds_read_b64_tr_b16', wfb + 4 * nt + 2, 2, 8, 32 * nt)
        for qt in range(1, 5): b.ds_read('ds_read_b128', ofb[qt], 4, 3, 8192 * qt + 1024 * u)
        for qt in range(5):
            for nt in range(4):
                a = OC + 16 * qt + 4 * nt
                b.mfma(a, wfb + 4 * nt, ofb[qt], None if u == 0 else a)
    stamp('wdone')
    S(f's_mul_i32 s27, s2, {PART}'); S('s_mul_i32 s28, s31, 10240'); S('s_add_u32 s27, s27, s28'); S(f's_add_u32 s27, s27, {WS_PART}')
    SB = 128
    for n in range(10):
        for q in range(4):
            a = OC + 8 * n + 2 * q
            V(f'v_cvt_pk_bf16_f32 v{SB+4*n+q}, v{a}, v{a+1}')
        if n and n % 4 == 0: S('s_add_u32 s27, s27, 4096')
        b.buf_store(SB + 4 * n, 4, 5, 36, 's27', (n % 4) * 1024, 'sc1')
    b.wait_vm(0)
    S(f's_branch {lwj}')
    b.label(lnw)
    for u in range(8): b.barrier()
    b.label(lwj); b.reset()
    b.barrier()
    stamp('stored')
    if o.stamps and 5 <= o.stampwave < 10:
        lz = newlab()
        S(f's_cmp_lg_u32 s24, {o.stampwave}'); S(f's_cbranch_scc1 {lz}')
        dump_stamps(nst[0]); S('s_endpgm')
        b.label(lz); b.reset()
    S('s_cmp_ge_u32 s24, 5'); S('s_cbranch_scc1 L_end')
    S('s_lshr_b32 s27, s2, 4'); S('s_lshl_b32 s28, s27, 7'); S(f's_add_u32 s28, s28, {WS_GF}')
    S('s_and_b32 s30, s2, 15')
    lf = newlab()
    S('s_cmp_lg_u32 s24, 0'); S(f's_cbranch_scc1 {lf}')
    S('s_lshl_b32 s31, s30, 3'); S('s_add_u32 s31, s31, s28')
    V('v_mov_b32 v144, s42'); V('v_mov_b32 v145, s43'); V('v_mov_b32 v146, 0')
    b.buf_store(144, 2, 146, 36, 's31', 0, 'sc1')
    b.label(lf); b.vm_q = []
    S('s_mul_i32 s31, s30, 280'); S('s_lshl_b32 s44, s24, 6'); S('s_add_u32 s31, s31, s44')
    V('v_add_u32 v16, s31, v0')
    V('v_lshlrev_b32 v17, 4, v16')
    V('v_lshrrev_b32 v18, 6, v16')
    V('v_and_b32 v19, 63, v16')
    V('v_mul_u32_u24 v20, 205, v18'); V('v_lshrrev_b32 v20, 11, v20')
    V('v_mul_u32_u24 v21, 10, v20'); V('v_sub_u32 v21, v18, v21')
    V('v_lshrrev_b32 v23, 1, v21'); V('v_and_b32 v22, 1, v21')
    V('v_and_b32 v24, 15, v19'); V('v_lshl_add_u32 v24, v23, 4, v24')
    V('v_mul_u32_u24 v24, 1792, v24')
    V('v_lshl_add_u32 v24, v20, 7, v24')
    V('v_lshl_add_u32 v24, v22, 6, v24')
    V('v_lshrrev_b32 v25, 4, v19'); V('v_lshl_add_u32 v24, v25, 3, v24')
    S('s_mul_i32 s44, s6, 143360'); S('s_mul_i32 s45, s7, 896'); S('s_add_u32 s44, s44, s45')
    S('s_mov_b32 s60, s56'); S('s_mov_b32 s61, s57'); S('s_mov_b32 s62, 1146880'); S('s_mov_b32 s63, 0x00020000')
    V('v_and_b32 v8, 15, v0'); V('v_lshlrev_b32 v8, 3, v8')
    poll(8, 's28', 148)
    stamp('gpoll')
    S('s_lshl_b32 s45, s24, 6'); V('v_add_u32 v26, s45, v0')
    V('v_cmp_gt_u32 vcc, 280, v26'); S('s_and_saveexec_b64 s[48:49], vcc')
    S(f's_mul_i32 s27, s27, {16 * PART}'); S(f's_add_u32 s27, s27, {WS_PART}')
    for w in range(16):
        b.buf_load(48 + 4 * w, 4, 17, 36, 's27', 0, 'sc1')
        if w < 15: S(f's_add_u32 s27, s27, {PART}')
    AC = 32
    for w in range(16):
        for q in range(4):
            src = 48 + 4 * w + q
            if w == 0:
                V(f'v_lshlrev_b32 v{AC+2*q}, 16, v{src}'); V(f'v_and_b32 v{AC+2*q+1}, 0xffff0000, v{src}')
            else:
                V(f'v_lshlrev_b32 v28, 16, v{src}'); V(f'v_and_b32 v29, 0xffff0000, v{src}')
                V(f'v_add_f32 v{AC+2*q}, v{AC+2*q}, v28'); V(f'v_add_f32 v{AC+2*q+1}, v{AC+2*q+1}, v29')
    for q in range(4): V(f'v_cvt_pk_bf16_f32 v{28+q}, v{AC+2*q}, v{AC+2*q+1}')
    b.buf_store(28, 2, 24, 60, 's44', 0); b.buf_store(30, 2, 24, 60, 's44', 32)
    if o.stamps:
        b.wait_vm(0)
        stamp('end')
        S(f's_cmp_lg_u32 s24, {o.stampwave}'); S('s_cbranch_scc1 L_end')
        dump_stamps(nst[0])
        print('stamps:', stnames, file=sys.stderr)
    S('s_endpgm')

    b.label('L_loader'); b.reset()
    if o.lprio: S(f's_setprio {o.lprio}')
    S('s_sub_u32 s25, s24, 10')
    V('v_and_b32 v1, 31, v0'); V('v_lshlrev_b32 v1, 4, v1'); V('v_lshrrev_b32 v2, 5, v0')
    V('v_lshl_add_u32 v3, v2, 15, v1')
    V('v_lshl_add_u32 v1, v2, 12, v1')
    V('v_lshlrev_b32 v4, 4, v0')
    V('v_lshrrev_b32 v6, 3, v0'); V('v_and_b32 v7, 7, v0')
    V('v_lshlrev_b32 v5, 12, v6'); V('v_lshl_add_u32 v5, v7, 4, v5')
    V('v_lshrrev_b32 v8, 1, v6'); S('s_lshl_b32 s27, s25, 2'); V('v_add_u32 v8, s27, v8'); V('v_xor_b32 v8, v8, v7')
    V('v_mul_u32_u24 v6, 896, v6'); V('v_lshl_add_u32 v6, v8, 4, v6')
    S(f's_mul_i32 s26, s25, {BLK}')
    S('s_lshl_b32 s48, s25, 13')
    S('s_lshl_b32 s51, s25, 10')
    S('s_mul_i32 s53, s25, 7168')
    S('s_mov_b32 s30, s29')
    b.wait_smem()
    S('s_lshl_b32 s27, s8, 9')
    S('s_add_u32 s32, s18, s27'); S('s_addc_u32 s33, s19, 0'); S('s_sub_u32 s34, 3670016, s27'); S('s_mov_b32 s35, 0x00020000')
    S('s_mul_i32 s27, s6, 71680')
    S('s_add_u32 s60, s12, s27'); S('s_addc_u32 s61, s13, 0'); S('s_mov_b32 s62, 71680'); S('s_mov_b32 s63, 0x00020000')
    def late_setup():
        S('s_lshl_b32 s27, s6, 3'); S('s_add_u32 s27, s27, s3'); S('s_lshl_b32 s27, s27, 19')
        S('s_add_u32 s36, s14, s27'); S('s_addc_u32 s37, s15, 0'); S('s_mov_b32 s38, 524288'); S('s_mov_b32 s39, 0x00020000')
        S('s_add_u32 s40, s16, s27'); S('s_addc_u32 s41, s17, 0'); S('s_mov_b32 s42, 524288'); S('s_mov_b32 s43, 0x00020000')
        S('s_mul_i32 s27, s8, 229376')
        S('s_add_u32 s44, s20, s27'); S('s_addc_u32 s45, s21, 0'); S('s_mov_b32 s46, 229376'); S('s_mov_b32 s47, 0x00020000')
        S('s_lshl_b32 s28, s25, 9')
        S(f's_mul_i32 s49, s25, {WOP}')
        S('s_mul_i32 s50, s25, 896')
    cur_q = [0]
    def adv_q(s):
        while cur_q[0] < s:
            S('s_add_u32 s30, s30, 1'); S('s_cmp_eq_u32 s30, 7'); S('s_cselect_b32 s30, 0, s30'); cur_q[0] += 1
    def issue_x(s, tag):
        adv_q(s)
        S('s_lshl_b32 s31, s30, 7'); S('s_add_u32 s31, s31, s53')
        for m in range(5):
            S(f's_add_u32 m0, s51, {A[("X", s)] + m * 2048}')
            if m: S(f's_add_u32 s31, s31, {2 * 7168}')
            b.dma(6, 60, 's31', 0, o.wflags, tag)
    def issue_wq(s, c, tag):
        adv_q(s)
        S('s_lshl_b32 s31, s30, 19'); S('s_add_u32 s31, s31, s48')
        for grp in range(2):
            for m in range(4):
                nn = 2 * m
                row = 32 * c + 16 * grp + ((nn & 3) | ((nn >> 2) << 3))
                S(f's_add_u32 m0, s26, {A[("WQ", (s, c))] + grp * GRP + nn * BLK}')
                if row: S(f's_add_u32 s52, s31, {row * 8192}')
                b.dma(3, 32, 's52' if row else 's31', 0, o.wflags, tag)
    first_w = [True]
    def issue(p):
        tag = ('u', p.use)
        if p.kind == 'X': issue_x(p.idx, tag)
        elif p.kind == 'WQ': issue_wq(p.idx[0], p.idx[1], tag)
        elif p.kind == 'Q6': issue_x(6, tag); issue_wq(6, 0, tag); issue_wq(6, 1, tag)
        elif p.kind == 'K':
            k, c = p.idx
            for grp in range(2):
                S(f's_add_u32 s31, s28, {k * 32768 + c * 16384 + grp * 8192}')
                for m in range(4):
                    nn = 2 * m
                    S(f's_add_u32 m0, s26, {p.addr + grp * GRP + nn * BLK - nn * 512}')
                    b.dma(1, 36, 's31', nn * 512, o.kvflags, tag)
        elif p.kind == 'V':
            v, c = p.idx; sl = v >> 2; hv = v & 3
            for grp in range(2):
                S(f's_add_u32 s31, s28, {(256 * hv + 128 * c + 64 * grp) * 512 + sl * 128}')
                for m in range(4):
                    nn = 2 * m
                    S(f's_add_u32 m0, s26, {p.addr + grp * GRP + nn * BLK - nn * 512}')
                    b.dma(5, 40, 's31', nn * 512, o.kvflags, tag)
        elif p.kind == 'W':
            u, c = p.idx
            if first_w[0]: S('s_mov_b32 exec_hi, 0x00ffffff'); first_w[0] = False
            for m in range(8):
                n = 2 * m
                if m % 2 == 0: S(f's_add_u32 s31, s50, {(32 * u + 16 * c + n) * 896}')
                S(f's_add_u32 m0, s49, {p.addr + n * WOP - (m & 1) * 1792}')
                b.dma(4, 44, 's31', (m & 1) * 1792, o.wflags, tag)
    D = [p for p in P if p.ninstr]
    nxt = [0]
    def issue_upto(n, limit):
        while nxt[0] < len(D) and D[nxt[0]].issue <= n:
            p = D[nxt[0]]
            if len(b.vm_q) + p.ninstr // 2 > limit and p.use > n + 2: break
            issue(p); nxt[0] += 1
    issue_upto(-1, o.t0)
    late_setup()
    for n in range(NBAR + 1):
        b.wait_tag(('u', n))
        b.barrier()
        issue_upto(n, o.tl)
    assert nxt[0] == len(D)
    b.label('L_end')
    S('s_endpgm')
    assert b.maxv < 168, b.maxv

    out = HEADER
    out += '; Override launch geometry by editing the next line\n'
    out += f'; @launch grid=(256,1,1) block=(768,1,1) lds={LDS_TOTAL}\n'
    out += '.amdgcn_target "amdgcn-amd-amdhsa--gfx950"\n.text\n'
    out += b.text() + kd(main, 168)
    return out

def parse(argv=None):
    ap = argparse.ArgumentParser()
    ap.add_argument('-o', default='v12.s')
    ap.add_argument('--kvflags', default='nt')
    ap.add_argument('--wflags', default='')
    ap.add_argument('--stamps', action='store_true')
    ap.add_argument('--stamplist', default='q0,qdone,qx,k0,k8,kdone,v0,v4,v8,vdone,comb,wdone,stored,gpoll')
    ap.add_argument('--stampwave', type=int, default=3)
    ap.add_argument('--npre', type=int, default=40)
    ap.add_argument('--t0', type=int, default=42)
    ap.add_argument('--tl', type=int, default=56)
    ap.add_argument('--wbefore', type=int, default=2)
    ap.add_argument('--lprio', type=int, default=3)
    ap.add_argument('--verbose', action='store_true')
    return ap.parse_args(argv)

if __name__ == '__main__':
    o = parse()
    open(o.o, 'w').write(gen(o))
```
